```python
import torch

def _softmax(x, axis=-1):
    return torch.softmax(x, dim=axis)
def _gelu(x):
    return torch.nn.functional.gelu(x, approximate="tanh")
def _silu(x):
    return torch.nn.functional.silu(x)
def _sigmoid(x):
    return torch.sigmoid(x)
def _layernorm(x, axis=-1, eps=1e-5):
    m = x.mean(dim=axis, keepdim=True)
    v = x.var(dim=axis, keepdim=True, unbiased=False)
    return (x - m) / torch.sqrt(v + eps)
def _scatter_add(tgt, idx, src, axis=0):
    return tgt.clone().index_add_(axis, idx, src)
def _segment_sum(src, seg, n):
    out = torch.zeros((n,) + src.shape[1:], dtype=src.dtype)
    return out.index_add_(0, seg, src)
def _pad(x, pw):
    flat = tuple(v for pair in reversed(pw) for v in pair)
    return torch.nn.functional.pad(x, flat)

kernel_name = 'concat_heads__mha_block_cached__gqa_block_cached__near_ridge'

def setup_inputs():

    _w = (lambda a: (lambda t: t.to(torch.bfloat16) if t.is_floating_point() else t)(torch.as_tensor(a)))
    def _A_setup():
        B, Sq, D = 8, 144, 1024
        H, Sk, Dh = 32, 1024, 128
        return {
            "x": _w((lambda *s: torch.randn(*s, dtype=torch.bfloat16) * 0.8)(B, Sq, D)),
            "k_cache": _w((lambda *s: torch.randn(*s, dtype=torch.bfloat16) * 0.8)(B, H, Sk, Dh)),
            "v_cache": _w((lambda *s: torch.randn(*s, dtype=torch.bfloat16) * 0.05)(B, H, Sk, Dh)),
            "wq": _w((lambda *s: torch.randn(*s, dtype=torch.bfloat16) * 0.8)(D, H * Dh) * (D ** -0.5)),
            "wo": _w((lambda *s: torch.randn(*s, dtype=torch.bfloat16) * 0.05)(H * Dh, D) * ((H * Dh) ** -0.5)),
        }
    _A_in = _A_setup()

    def _B_setup():
        B, Sq, D = 8, 144, 1024
        Hq, Hkv, Sk, Dh = 32, 32, 1024, 128
        assert Hq % Hkv == 0, (Hq, Hkv)
        return {
            "x": _w((lambda *s: torch.randn(*s, dtype=torch.bfloat16) * 0.8)(B, Sq, D)),
            "k_cache": _w((lambda *s: torch.randn(*s, dtype=torch.bfloat16) * 0.8)(B, Hkv, Sk, Dh)),
            "v_cache": _w((lambda *s: torch.randn(*s, dtype=torch.bfloat16) * 0.05)(B, Hkv, Sk, Dh)),
            "wq": _w((lambda *s: torch.randn(*s, dtype=torch.bfloat16) * 0.8)(D, Hq * Dh) * (D ** -0.5)),
            "wo": _w((lambda *s: torch.randn(*s, dtype=torch.bfloat16) * 0.05)(Hq * Dh, D) * ((Hq * Dh) ** -0.5)),
        }
    _B_in = _B_setup()

    return {
        "A_x": _A_in["x"],
        "A_k_cache": _A_in["k_cache"],
        "A_v_cache": _A_in["v_cache"],
        "A_wq": _A_in["wq"],
        "A_wo": _A_in["wo"],
        "B_x": _B_in["x"],
        "B_k_cache": _B_in["k_cache"],
        "B_v_cache": _B_in["v_cache"],
        "B_wq": _B_in["wq"],
        "B_wo": _B_in["wo"],
    }

def reference(A_x, A_k_cache, A_v_cache, A_wq, A_wo, B_x, B_k_cache, B_v_cache, B_wq, B_wo):
    def _A_ref(x, k_cache, v_cache, wq, wo):
        B, Sq, D = x.shape
        H, Dh = 32, 128
        q = (lambda x, *d: x.permute(*d))((x @ wq).reshape(B, Sq, H, Dh), 0, 2, 1, 3)
        scores = torch.einsum("bhqd,bhkd->bhqk", q, k_cache) * (Dh ** -0.5)
        p = _softmax(scores, axis=-1)
        o = torch.einsum("bhqk,bhkd->bhqd", p, v_cache)
        return (lambda x, *d: x.permute(*d))(o, 0, 2, 1, 3).reshape(B, Sq, H * Dh) @ wo

    def _B_ref(x, k_cache, v_cache, wq, wo):
        B, Sq, D = x.shape
        Hq, Dh = 32, 128
        Hkv = k_cache.shape[1]
        rep = Hq // Hkv
        q = (lambda x, *d: x.permute(*d))((x @ wq).reshape(B, Sq, Hq, Dh), 0, 2, 1, 3)
        k = (lambda x, n, axis: torch.repeat_interleave(x, n, dim=axis))(k_cache, rep, axis=1)
        v = (lambda x, n, axis: torch.repeat_interleave(x, n, dim=axis))(v_cache, rep, axis=1)
        scores = torch.einsum("bhqd,bhkd->bhqk", q, k) * (Dh ** -0.5)
        p = _softmax(scores, axis=-1)
        o = torch.einsum("bhqk,bhkd->bhqd", p, v)
        return (lambda x, *d: x.permute(*d))(o, 0, 2, 1, 3).reshape(B, Sq, Hq * Dh) @ wo

    a = _A_ref(A_x, A_k_cache, A_v_cache, A_wq, A_wo)
    b = _B_ref(B_x, B_k_cache, B_v_cache, B_wq, B_wo)
    return torch.concatenate([a, b], axis=-1)
```

```python
import sys, struct

NAME = "concat_heads__mha_block_cached__gqa_block_cached__near_ridge"

def f32bits(x):
    return struct.unpack("<I", struct.pack("<f", x))[0]

class Asm:
    def __init__(self):
        self.lines = []
        self.uid = 0
    def __call__(self, s):
        self.lines.append("    " + s)
    def label(self, l):
        self.lines.append(l + ":")
    def c(self, s):
        self.lines.append("    ; " + s)
    def newlabel(self, p):
        self.uid += 1
        return "L_%s_%d" % (p, self.uid)

def vr(b, n=1):
    return "v%d" % b if n == 1 else "v[%d:%d]" % (b, b + n - 1)

STAGE = 34816
XT = 18432
BUF = [0, STAGE, 2 * STAGE]
QB = STAGE
RING = 98304
V_LANE = 1
V_XA = 2
V_WA = 6
V_DMA = 10
V_KA = 12
V_VA = 16
V_KDMA = 24
V_VDMA = 25
V_BP16 = 26
V_BP32 = 27
V_OST = 28
V_T = 30
G_ACC = 40
G_XF = 80
G_WF = 120
A_O = 40
A_Q = 104
A_K = 136
A_V = 168
A_S = 200
A_P = 216
A_MC = 224
A_L = 226
A_MX = 228
A_T = 230

S_WAVE = 3
SRD_X = 4
SRD_W = 8
SRD_K = 12
SRD_V = 16
SRD_O = 20
S_BLK = 24; S_B = 25; S_HEAD = 26; S_ROUND = 27
S_C = 28; S_THR = 29; S_LO = 30; S_ROT = 31
S_PTR = 32
S_WS = 40
S_KOFF = 42
S_KIDX = 43
S_T0 = 44; S_T1 = 45
S_ROWB = 46
S_LDSB = 47
S_KVOFF = 48
S_CNT = 49
S_KVL = 50
S_T2 = 51; S_T3 = 52
S_OUT = 54
S_PTR2 = 56

def gemm_issue(a, cls, buf, XRS, WRS, NS, kstepX, kstepW, nt_flag=""):
    if cls == 0:
        a("s_mul_i32 s%d, s%d, %d" % (S_KOFF, S_KIDX, kstepW))
        a("s_add_u32 s%d, s%d, s%d" % (S_KOFF, S_KOFF, S_ROWB))
        for i in range(4):
            a("s_add_u32 m0, s%d, %d" % (S_LDSB, buf + XT + i * 1024))
            a("s_add_u32 s%d, s%d, %d" % (S_T0, S_KOFF, i * 4 * WRS))
            a("buffer_load_dwordx4 v%d, s[%d:%d], s%d offen%s lds" % (V_DMA + ((i >> 1) & 1), SRD_W, SRD_W + 3, S_T0, nt_flag))
    else:
        a("s_mul_i32 s%d, s%d, %d" % (S_KOFF, S_KIDX, kstepX))
        a("s_add_u32 s%d, s%d, s%d" % (S_KOFF, S_KOFF, S_ROWB))
        for i in range(5):
            a("s_add_u32 m0, s%d, %d" % (S_LDSB, buf + i * 1024))
            a("s_add_u32 s%d, s%d, %d" % (S_T0, S_KOFF, i * 8 * XRS))
            if i == 4:
                a("s_mov_b32 exec_hi, 0")
            a("buffer_load_dwordx4 v%d, s[%d:%d], s%d offen%s lds" % (V_DMA + (i & 1), SRD_X, SRD_X + 3, S_T0, nt_flag))
            if i == 4:
                a("s_mov_b32 exec_hi, -1")
    a("s_add_u32 s%d, s%d, 1" % (S_KIDX, S_KIDX))
    a("s_and_b32 s%d, s%d, %d" % (S_KIDX, S_KIDX, NS - 1))

def gemm_setup_lane_regs(a, XRS, WRS):
    T = V_T
    a("v_lshrrev_b32 v%d, 4, v%d" % (T, V_LANE))
    a("v_and_b32 v%d, 15, v%d" % (T + 1, V_LANE))
    a("v_lshrrev_b32 v%d, 1, v%d" % (T + 2, T + 1))
    a("v_xor_b32 v%d, v%d, v%d" % (T + 2, T + 2, T))
    a("v_lshlrev_b32 v%d, 4, v%d" % (T + 2, T + 2))
    a("v_lshl_add_u32 v%d, v%d, 7, v%d" % (V_XA + 0, T + 1, T + 2))
    a("v_xor_b32 v%d, 64, v%d" % (V_XA + 1, V_XA + 0))
    a("v_add_u32 v%d, %d, v%d" % (V_XA + 2, BUF[2], V_XA + 0))
    a("v_add_u32 v%d, %d, v%d" % (V_XA + 3, BUF[2], V_XA + 1))
    a("v_lshrrev_b32 v%d, 2, v%d" % (T + 2, T + 1))
    a("v_and_b32 v%d, 1, v%d" % (T + 3, T))
    a("v_lshl_add_u32 v%d, v%d, 2, v%d" % (T + 3, T + 3, T + 2))
    a("s_and_b32 s%d, s%d, 3" % (S_T0, S_WAVE))
    a("s_lshl_b32 s%d, s%d, 1" % (S_T0, S_T0))
    a("v_xor_b32 v%d, s%d, v%d" % (T + 4, S_T0, T + 3))
    a("v_lshlrev_b32 v%d, 5, v%d" % (T + 4, T + 4))
    a("v_lshl_add_u32 v%d, v%d, 11, v%d" % (T + 4, T, T + 4))
    a("v_lshl_add_u32 v%d, v%d, 8, v%d" % (T + 4, T + 2, T + 4))
    a("v_and_b32 v%d, 3, v%d" % (T + 5, T + 1))
    a("v_lshl_add_u32 v%d, v%d, 3, v%d" % (V_WA + 0, T + 5, T + 4))
    a("v_xor_b32 v%d, 32, v%d" % (V_WA + 1, V_WA + 0))
    a("v_add_u32 v%d, %d, v%d" % (V_WA + 2, BUF[2], V_WA + 0))
    a("v_add_u32 v%d, %d, v%d" % (V_WA + 3, BUF[2], V_WA + 1))

def gemm_setup_dma(a, cls, XRS, WRS):
    T = V_T
    if cls == 0:
        a("v_lshrrev_b32 v%d, 4, v%d" % (T, V_LANE))
        a("v_and_b32 v%d, 15, v%d" % (T + 1, V_LANE))
        a("v_lshlrev_b32 v%d, 1, v%d" % (T + 2, T))
        a("v_xor_b32 v%d, v%d, v%d" % (T + 2, T + 2, T + 1))
        a("v_lshlrev_b32 v%d, 4, v%d" % (T + 2, T + 2))
        a("v_mul_u32_u24 v%d, %d, v%d" % (T + 3, WRS, T))
        a("v_add_u32 v%d, v%d, v%d" % (V_DMA, T + 2, T + 3))
        a("v_xor_b32 v%d, 128, v%d" % (V_DMA + 1, V_DMA))
        a("s_mul_i32 s%d, s%d, %d" % (S_ROWB, S_WAVE, 16 * WRS))
        a("s_lshl_b32 s%d, s%d, 12" % (S_LDSB, S_WAVE))
    else:
        a("s_sub_u32 s%d, s%d, 4" % (S_T0, S_WAVE))
        a("s_mul_i32 s%d, s%d, 18" % (S_T1, S_T0))
        a("v_lshrrev_b32 v%d, 3, v%d" % (T, V_LANE))
        a("v_and_b32 v%d, 7, v%d" % (T + 1, V_LANE))
        a("v_lshrrev_b32 v%d, 1, v%d" % (T + 2, T))
        a("v_add_u32 v%d, s%d, v%d" % (T + 2, S_T1, T + 2))
        a("v_and_b32 v%d, 7, v%d" % (T + 2, T + 2))
        a("v_xor_b32 v%d, v%d, v%d" % (T + 2, T + 2, T + 1))
        a("v_lshlrev_b32 v%d, 4, v%d" % (T + 2, T + 2))
        a("v_mul_u32_u24 v%d, %d, v%d" % (T + 3, XRS, T))
        a("v_add_u32 v%d, v%d, v%d" % (V_DMA, T + 2, T + 3))
        a("v_xor_b32 v%d, 64, v%d" % (V_DMA + 1, V_DMA))
        a("s_mul_i32 s%d, s%d, %d" % (S_ROWB, S_T0, 36 * XRS))
        a("s_mul_i32 s%d, s%d, %d" % (S_LDSB, S_T0, 36 * 128))

def gemm_compute(a, cls, bi):
    nq = 5 if cls == 0 else 4
    jb = 0 if cls == 0 else 5
    st = 1 if bi == 2 else 0
    boff = 0 if bi == 2 else BUF[bi]
    for ss in range(2):
        for nt in range(2):
            for hh in range(2):
                a("ds_read_b64_tr_b16 %s, v%d offset:%d" % (vr(G_WF + (ss * 2 + nt) * 4 + 2 * hh, 2), V_WA + 2 * st + nt,
                                                            boff + XT + ss * 8192 + hh * 1024))
        for j in range(nq):
            a("ds_read_b128 %s, v%d offset:%d" % (vr(G_XF + (ss * 5 + j) * 4, 4), V_XA + 2 * st + ss, boff + (jb + j) * 2048))
    for ss in range(2):
        a("s_waitcnt lgkmcnt(%d)" % ((4 + nq) if ss == 0 else 0))
        for j in range(nq):
            for nt in range(2):
                acc = vr(G_ACC + (nt * 5 + j) * 4, 4)
                a("v_mfma_f32_16x16x32_bf16 %s, %s, %s, %s" % (acc, vr(G_WF + (ss * 2 + nt) * 4, 4), vr(G_XF + (ss * 5 + j) * 4, 4), acc))

def gemm_zero_acc(a, cls):
    nq = 5 if cls == 0 else 4
    for nt in range(2):
        for j in range(nq):
            for r in range(4):
                a("v_mov_b32 v%d, 0" % (G_ACC + (nt * 5 + j) * 4 + r))

def gemm_loop(a, cls, NS, XRS, WRS, kstepX, kstepW, ntf):
    NP = 4 if cls == 0 else 5
    for s in range(NS):
        a.c("---- stage %d" % s)
        a("s_waitcnt vmcnt(%d)" % (NP if s + 1 < NS else 0))
        a("s_barrier")
        if s + 2 < NS:
            gemm_issue(a, cls, BUF[(s + 2) % 3], XRS, WRS, NS, kstepX, kstepW, ntf)
        gemm_compute(a, cls, s % 3)

def kv_issue(a, slot, ntf=" nt"):
    a("s_add_u32 m0, s%d, %d" % (S_KVL, RING + slot * 16384))
    a("s_nop 0")
    a("buffer_load_dwordx4 v%d, s[%d:%d], s%d offen%s lds" % (V_KDMA, SRD_K, SRD_K + 3, S_KVOFF, ntf))
    a("s_add_u32 m0, s%d, %d" % (S_KVL, RING + slot * 16384 + 8192))
    a("s_nop 0")
    a("buffer_load_dwordx4 v%d, s[%d:%d], s%d offen%s lds" % (V_VDMA, SRD_V, SRD_V + 3, S_KVOFF, ntf))
    a("s_add_u32 s%d, s%d, 8192" % (S_KVOFF, S_KVOFF))

def attn_setup_lane_regs(a):
    T = V_T
    a("v_lshrrev_b32 v%d, 4, v%d" % (T, V_LANE))
    a("v_and_b32 v%d, 15, v%d" % (T + 1, V_LANE))
    a("v_xor_b32 v%d, v%d, v%d" % (T + 2, T, T + 1))
    a("v_lshlrev_b32 v%d, 4, v%d" % (T + 2, T + 2))
    a("v_lshl_add_u32 v%d, v%d, 8, v%d" % (T + 2, T + 1, T + 2))
    a("v_add_u32 v%d, %d, v%d" % (V_KA, RING, T + 2))
    for ks in range(1, 4):
        a("v_xor_b32 v%d, %d, v%d" % (V_KA + ks, ks * 64, V_KA))
    a("v_lshrrev_b32 v%d, 2, v%d" % (T + 2, T + 1))
    a("v_and_b32 v%d, 1, v%d" % (T + 3, T))
    a("v_lshl_add_u32 v%d, v%d, 2, v%d" % (T + 3, T + 3, T + 2))
    a("v_lshlrev_b32 v%d, 5, v%d" % (T + 3, T + 3))
    a("v_lshl_add_u32 v%d, v%d, 10, v%d" % (T + 3, T, T + 3))
    a("v_lshl_add_u32 v%d, v%d, 8, v%d" % (T + 3, T + 2, T + 3))
    a("v_and_b32 v%d, 3, v%d" % (T + 4, T + 1))
    a("v_lshl_add_u32 v%d, v%d, 3, v%d" % (T + 3, T + 4, T + 3))
    a("v_add_u32 v%d, %d, v%d" % (V_VA, RING + 8192, T + 3))
    for dt in range(1, 8):
        a("v_xor_b32 v%d, %d, v%d" % (V_VA + dt, dt * 32, V_VA))
    a("s_lshl_b32 s%d, s%d, 2" % (S_T0, S_WAVE))
    a("v_add_u32 v%d, s%d, v%d" % (T + 2, S_T0, T))
    a("v_and_b32 v%d, 15, v%d" % (T + 3, T + 2))
    a("v_xor_b32 v%d, v%d, v%d" % (T + 3, T + 3, T + 1))
    a("v_lshlrev_b32 v%d, 4, v%d" % (T + 3, T + 3))
    a("v_lshl_add_u32 v%d, v%d, 8, v%d" % (V_KDMA, T + 2, T + 3))
    a("v_and_b32 v%d, 7, v%d" % (T + 3, T + 2))
    a("v_lshlrev_b32 v%d, 1, v%d" % (T + 3, T + 3))
    a("v_xor_b32 v%d, v%d, v%d" % (T + 3, T + 3, T + 1))
    a("v_lshlrev_b32 v%d, 4, v%d" % (T + 3, T + 3))
    a("v_lshl_add_u32 v%d, v%d, 8, v%d" % (V_VDMA, T + 2, T + 3))
    a("s_lshl_b32 s%d, s%d, 10" % (S_KVL, S_WAVE))
    a("v_xor_b32 v%d, 16, v%d" % (T + 2, V_LANE))
    a("v_lshlrev_b32 v%d, 2, v%d" % (V_BP16, T + 2))
    a("v_xor_b32 v%d, 32, v%d" % (T + 2, V_LANE))
    a("v_lshlrev_b32 v%d, 2, v%d" % (V_BP32, T + 2))
    a("v_lshlrev_b32 v%d, 3, v%d" % (T + 2, T))
    a("v_lshl_add_u32 v%d, v%d, 13, v%d" % (V_OST, T + 1, T + 2))

def q_write(a, cls):
    nq = 5 if cls == 0 else 4
    jb = 0 if cls == 0 else 5
    T = V_T
    a("v_lshrrev_b32 v%d, 4, v%d" % (T, V_LANE))
    a("v_and_b32 v%d, 15, v%d" % (T + 1, V_LANE))
    a("s_and_b32 s%d, s%d, 3" % (S_T0, S_WAVE))
    a("s_lshl_b32 s%d, s%d, 2" % (S_T0, S_T0))
    a("v_lshrrev_b32 v%d, 1, v%d" % (T + 2, T))
    a("v_add_u32 v%d, s%d, v%d" % (T + 2, S_T0, T + 2))
    a("v_xor_b32 v%d, v%d, v%d" % (T + 2, T + 2, T + 1))
    a("v_lshlrev_b32 v%d, 4, v%d" % (T + 2, T + 2))
    a("v_lshl_add_u32 v%d, v%d, 8, v%d" % (T + 2, T + 1, T + 2))
    a("v_and_b32 v%d, 1, v%d" % (T + 3, T))
    a("v_lshl_add_u32 v%d, v%d, 3, v%d" % (T + 2, T + 3, T + 2))
    a("v_add_u32 v%d, %d, v%d" % (T + 2, QB, T + 2))
    a("v_xor_b32 v%d, 32, v%d" % (T + 3, T + 2))
    a("s_nop 7")
    for nt in range(2):
        for j in range(nq):
            acc = G_ACC + (nt * 5 + j) * 4
            a("v_cvt_pk_bf16_f32 v%d, v%d, v%d" % (T + 4, acc, acc + 1))
            a("v_cvt_pk_bf16_f32 v%d, v%d, v%d" % (T + 5, acc + 2, acc + 3))
            a("ds_write_b64 v%d, %s offset:%d" % (T + 2 + nt, vr(T + 4, 2), (jb + j) * 4096))
            a("s_nop 0")

def q_read(a, nq, jsg):
    T = V_T
    for ks in range(4):
        a("v_add_u32 v%d, %d, v%d" % (T + ks, QB - RING, V_KA + ks))
        a("v_add_u32 v%d, s%d, v%d" % (T + ks, jsg, T + ks))
    for j in range(nq):
        for ks in range(4):
            a("ds_read_b128 %s, v%d offset:%d" % (vr(A_Q + (j * 4 + ks) * 4, 4), T + ks, j * 4096))

def attn_step(a, nq, slot, vm, issue_slot):
    a("s_waitcnt vmcnt(%d)" % vm)
    a("s_barrier")
    if issue_slot is not None:
        kv_issue(a, issue_slot)
    so = slot * 16384
    for t in range(2):
        for ks in range(4):
            a("ds_read_b128 %s, v%d offset:%d" % (vr(A_K + (t * 4 + ks) * 4, 4), V_KA + ks, so + t * 4096))
    vreads = [(dt, hh) for dt in range(8) for hh in range(2)]
    def vread(dt, hh):
        a("ds_read_b64_tr_b16 %s, v%d offset:%d" % (vr(A_V + dt * 4 + 2 * hh, 2), V_VA + dt, so + hh * 4096))
    for (dt, hh) in vreads[:6]:
        vread(dt, hh)
    a("s_waitcnt lgkmcnt(10)")
    for j in range(nq):
        for ks in range(4):
            s = vr(A_S + (j * 2 + 0) * 4, 4)
            a("v_mfma_f32_16x16x32_bf16 %s, %s, %s, %s" % (s, vr(A_K + ks * 4, 4), vr(A_Q + (j * 4 + ks) * 4, 4), "0" if ks == 0 else s))
    a("s_waitcnt lgkmcnt(6)")
    for j in range(nq):
        for ks in range(4):
            s = vr(A_S + (j * 2 + 1) * 4, 4)
            a("v_mfma_f32_16x16x32_bf16 %s, %s, %s, %s" % (s, vr(A_K + (4 + ks) * 4, 4), vr(A_Q + (j * 4 + ks) * 4, 4), "0" if ks == 0 else s))
    for (dt, hh) in vreads[6:]:
        vread(dt, hh)
    a("s_nop 7")
    for j in range(nq):
        for i in range(8):
            s = A_S + j * 8 + i
            a("v_fma_f32 v%d, v%d, s%d, -v%d" % (s, s, S_C, A_MC + j))
    for j in range(nq):
        s = A_S + j * 8
        m = A_MX + j
        a("v_max3_f32 v%d, v%d, v%d, v%d" % (m, s, s + 1, s + 2))
        a("v_max3_f32 v%d, v%d, v%d, v%d" % (m, m, s + 3, s + 4))
        a("v_max3_f32 v%d, v%d, v%d, v%d" % (m, m, s + 5, s + 6))
        a("v_max_f32 v%d, v%d, v%d" % (m, m, s + 7))
    if nq == 2:
        a("v_max_f32 v%d, v%d, v%d" % (A_T, A_MX, A_MX + 1))
        a("v_cmp_lt_f32 vcc, s%d, v%d" % (S_THR, A_T))
    else:
        a("v_cmp_lt_f32 vcc, s%d, v%d" % (S_THR, A_MX))
    rare = a.newlabel("rare")
    back = a.newlabel("back")
    a("s_cbranch_vccnz %s" % rare)
    a.label(back)
    for j in range(nq):
        for i in range(8):
            s = A_S + j * 8 + i
            a("v_exp_f32 v%d, v%d" % (s, s))
    a("s_nop 0")
    for j in range(nq):
        s = A_S + j * 8
        for i in range(4):
            a("v_cvt_pk_bf16_f32 v%d, v%d, v%d" % (A_P + j * 4 + i, s + 2 * i, s + 2 * i + 1))
    for j in range(nq):
        s = A_S + j * 8
        t = A_T
        a("v_add_f32 v%d, v%d, v%d" % (t, s, s + 1))
        a("v_add_f32 v%d, v%d, v%d" % (t + 1, s + 2, s + 3))
        a("v_add_f32 v%d, v%d, v%d" % (t + 2, s + 4, s + 5))
        a("v_add_f32 v%d, v%d, v%d" % (t + 3, s + 6, s + 7))
        a("v_add_f32 v%d, v%d, v%d" % (t, t, t + 1))
        a("v_add_f32 v%d, v%d, v%d" % (t + 2, t + 2, t + 3))
        a("v_add_f32 v%d, v%d, v%d" % (t, t, t + 2))
        a("v_add_f32 v%d, v%d, v%d" % (A_L + j, A_L + j, t))
    a("s_waitcnt lgkmcnt(0)")
    for dt in range(8):
        for j in range(nq):
            o = vr(A_O + (j * 8 + dt) * 4, 4)
            a("v_mfma_f32_16x16x32_bf16 %s, %s, %s, %s" % (o, vr(A_V + dt * 4, 4), vr(A_P + j * 4, 4), o))
    return (rare, back)

def attn_rare(a, nq, rare, back):
    a.label(rare)
    T = A_T
    for j in range(nq):
        m = A_MX + j
        a("ds_bpermute_b32 v%d, v%d, v%d" % (T, V_BP16, m))
        a("s_waitcnt lgkmcnt(0)")
        a("v_max_f32 v%d, v%d, v%d" % (m, m, T))
        a("s_nop 0")
        a("ds_bpermute_b32 v%d, v%d, v%d" % (T, V_BP32, m))
        a("s_waitcnt lgkmcnt(0)")
        a("v_max_f32 v%d, v%d, v%d" % (m, m, T))
        a("v_max_f32 v%d, s%d, v%d" % (m, S_LO, m))
        a("v_add_f32 v%d, v%d, v%d" % (A_MC + j, A_MC + j, m))
        for i in range(8):
            s = A_S + j * 8 + i
            a("v_sub_f32 v%d, v%d, v%d" % (s, s, m))
        a("v_max_f32 v%d, 0, v%d" % (T, m))
        a("v_sub_f32 v%d, 0, v%d" % (T, T))
        a("v_exp_f32 v%d, v%d" % (T, T))
        a("s_nop 0")
        a("v_mul_f32 v%d, v%d, v%d" % (A_L + j, A_L + j, T))
        for i in range(32):
            o = A_O + j * 32 + i
            a("v_mul_f32 v%d, v%d, v%d" % (o, o, T))
    a("s_mov_b32 s%d, 0x%08x" % (S_THR, f32bits(8.0)))
    a("s_mov_b32 s%d, 0" % S_LO)
    a("s_branch %s" % back)

def attn_epilogue(a, nq, jsg_rows):
    T = A_T
    a("s_nop 7")
    for j in range(nq):
        l = A_L + j
        a("ds_bpermute_b32 v%d, v%d, v%d" % (T, V_BP16, l))
        a("s_waitcnt lgkmcnt(0)")
        a("v_add_f32 v%d, v%d, v%d" % (l, l, T))
        a("s_nop 0")
        a("ds_bpermute_b32 v%d, v%d, v%d" % (T, V_BP32, l))
        a("s_waitcnt lgkmcnt(0)")
        a("v_add_f32 v%d, v%d, v%d" % (l, l, T))
        a("v_rcp_f32 v%d, v%d" % (l, l))
        a("s_nop 0")
        a("s_add_u32 s%d, s%d, %d" % (S_T0, jsg_rows, j * 16 * 8192))
        for dt in range(8):
            o = A_O + (j * 8 + dt) * 4
            for r in range(4):
                a("v_mul_f32 v%d, v%d, v%d" % (o + r, o + r, l))
            a("v_cvt_pk_bf16_f32 v%d, v%d, v%d" % (o, o, o + 1))
            a("v_cvt_pk_bf16_f32 v%d, v%d, v%d" % (o + 1, o + 2, o + 3))
            a("buffer_store_dwordx2 %s, v%d, s[%d:%d], s%d offen offset:%d" % (vr(o, 2), V_OST, SRD_O, SRD_O + 3, S_T0, dt * 32))

def attn_phase(a, nq):
    for j in range(nq):
        for i in range(32):
            a("v_mov_b32 v%d, 0" % (A_O + j * 32 + i))
        a("v_mov_b32 v%d, 0" % (A_MC + j))
        a("v_mov_b32 v%d, 0" % (A_L + j))
    a("s_mov_b32 s%d, 0xff800000" % S_THR)
    a("s_mov_b32 s%d, 0xff800000" % S_LO)
    rares = []
    loop = a.newlabel("attn_loop")
    a("s_mov_b32 s%d, 0" % S_CNT)
    a.label(loop)
    for u in range(4):
        n = u
        rares.append(attn_step(a, nq, (n + 1) % 4, 4, n % 4))
    a("s_add_u32 s%d, s%d, 1" % (S_CNT, S_CNT))
    a("s_cmp_lt_u32 s%d, 7" % S_CNT)
    a("s_cbranch_scc1 %s" % loop)
    rares.append(attn_step(a, nq, (28 + 1) % 4, 4, 28 % 4))
    rares.append(attn_step(a, nq, (29 + 1) % 4, 4, None))
    rares.append(attn_step(a, nq, (30 + 1) % 4, 2, None))
    rares.append(attn_step(a, nq, (31 + 1) % 4, 0, None))
    return rares

def kernel_k1(a, name, opts):
    ntx = opts.get("nt_xw", "")
    a.lines.append(".p2align 8")
    a.lines.append(".type %s,@function" % name)
    a.label(name)
    done = "L_k1_done"
    a("s_cmp_ge_u32 s2, 256")
    a("s_cbranch_scc1 %s" % done)
    a("v_and_b32 v%d, 63, v0" % V_LANE)
    a("v_lshrrev_b32 v%d, 6, v0" % V_T)
    a("s_nop 0")
    a("v_readfirstlane_b32 s%d, v%d" % (S_WAVE, V_T))
    a("s_and_b32 s%d, s2, 7" % S_T0)
    a("s_lshr_b32 s%d, s2, 3" % S_T1)
    a("s_lshr_b32 s%d, s%d, 2" % (S_BLK, S_T0))
    a("s_and_b32 s%d, s%d, 3" % (S_T2, S_T0))
    a("s_and_b32 s%d, s%d, 7" % (S_B, S_T1))
    a("s_lshr_b32 s%d, s%d, 3" % (S_T3, S_T1))
    a("s_lshl_b32 s%d, s%d, 3" % (S_HEAD, S_T2))
    a("s_add_u32 s%d, s%d, s%d" % (S_HEAD, S_HEAD, S_T3))
    a("s_lshl_b32 s%d, s%d, 1" % (S_ROT, S_B))
    a("s_lshl_b32 s%d, s%d, 2" % (S_T3, S_T3))
    a("s_add_u32 s%d, s%d, s%d" % (S_ROT, S_ROT, S_T3))
    a("s_and_b32 s%d, s%d, 15" % (S_ROT, S_ROT))
    a("s_mul_i32 s%d, s%d, 40" % (S_T0, S_BLK))
    a("s_add_u32 s%d, s0, s%d" % (S_PTR2, S_T0))
    a("s_addc_u32 s%d, s1, 0" % (S_PTR2 + 1))
    a("s_load_dwordx8 s[%d:%d], s[%d:%d], 0" % (S_PTR, S_PTR + 7, S_PTR2, S_PTR2 + 1))
    a("s_load_dwordx2 s[%d:%d], s[0:1], 96" % (S_WS, S_WS + 1))
    a("s_mov_b32 s%d, 0x%08x" % (S_C, f32bits(128 ** -0.5 * 1.4426950408889634)))
    gemm_setup_lane_regs(a, 2048, 8192)
    attn_setup_lane_regs(a)
    a("s_waitcnt lgkmcnt(0)")
    a("s_mul_i32 s%d, s%d, 294912" % (S_T0, S_B))
    a("s_add_u32 s%d, s%d, s%d" % (SRD_X, S_PTR, S_T0))
    a("s_addc_u32 s%d, s%d, 0" % (SRD_X + 1, S_PTR + 1))
    a("s_mov_b32 s%d, 294912" % (SRD_X + 2))
    a("s_mov_b32 s%d, 0x20000" % (SRD_X + 3))
    a("s_mov_b32 s%d, 0" % S_ROUND)
    rnd = "L_k1_round"
    a.label(rnd)
    a("s_lshl_b32 s%d, s%d, 8" % (S_T0, S_HEAD))
    a("s_add_u32 s%d, s%d, s%d" % (SRD_W, S_PTR + 6, S_T0))
    a("s_addc_u32 s%d, s%d, 0" % (SRD_W + 1, S_PTR + 7))
    a("s_sub_u32 s%d, 8388608, s%d" % (SRD_W + 2, S_T0))
    a("s_mov_b32 s%d, 0x20000" % (SRD_W + 3))
    a("s_lshl_b32 s%d, s%d, 5" % (S_T0, S_B))
    a("s_add_u32 s%d, s%d, s%d" % (S_T0, S_T0, S_HEAD))
    a("s_lshl_b32 s%d, s%d, 18" % (S_T0, S_T0))
    a("s_add_u32 s%d, s%d, s%d" % (SRD_K, S_PTR + 2, S_T0))
    a("s_addc_u32 s%d, s%d, 0" % (SRD_K + 1, S_PTR + 3))
    a("s_mov_b32 s%d, 262144" % (SRD_K + 2))
    a("s_mov_b32 s%d, 0x20000" % (SRD_K + 3))
    a("s_add_u32 s%d, s%d, s%d" % (SRD_V, S_PTR + 4, S_T0))
    a("s_addc_u32 s%d, s%d, 0" % (SRD_V + 1, S_PTR + 5))
    a("s_mov_b32 s%d, 262144" % (SRD_V + 2))
    a("s_mov_b32 s%d, 0x20000" % (SRD_V + 3))
    a("s_mul_i32 s%d, s%d, %d" % (S_T0, S_BLK, 1152 * 8192))
    a("s_mul_i32 s%d, s%d, %d" % (S_T1, S_B, 144 * 8192))
    a("s_add_u32 s%d, s%d, s%d" % (S_T0, S_T0, S_T1))
    a("s_lshl_b32 s%d, s%d, 8" % (S_T1, S_HEAD))
    a("s_add_u32 s%d, s%d, s%d" % (S_T0, S_T0, S_T1))
    a("s_add_u32 s%d, s%d, s%d" % (SRD_O, S_WS, S_T0))
    a("s_addc_u32 s%d, s%d, 0" % (SRD_O + 1, S_WS + 1))
    a("s_mov_b32 s%d, %d" % (SRD_O + 2, 143 * 8192 + 256))
    a("s_mov_b32 s%d, 0x20000" % (SRD_O + 3))
    a("s_barrier")
    a("s_mov_b32 s%d, 0" % S_KVOFF)
    for n in range(3):
        kv_issue(a, (n + 1) % 4)
    a("s_mov_b32 s%d, s%d" % (S_KIDX, S_ROT))
    a("s_cmp_ge_u32 s%d, 4" % S_WAVE)
    a("s_cbranch_scc1 L_k1_g1")
    for cls in range(2):
        a.label("L_k1_g%d" % cls)
        gemm_setup_dma(a, cls, 2048, 8192)
        gemm_zero_acc(a, cls)
        gemm_issue(a, cls, BUF[0], 2048, 8192, 16, 128, 64 * 8192, ntx)
        gemm_issue(a, cls, BUF[1], 2048, 8192, 16, 128, 64 * 8192, ntx)
        gemm_loop(a, cls, 16, 2048, 8192, 128, 64 * 8192, ntx)
        q_write(a, cls)
        a("s_waitcnt lgkmcnt(0)")
        if cls == 0:
            a("s_branch L_k1_gdone")
    a.label("L_k1_gdone")
    a("s_barrier")
    if opts.get("dump_q"):
        pass
    a("s_cmp_eq_u32 s%d, 0" % S_WAVE)
    a("s_cbranch_scc0 L_k1_a1")
    allr = []
    for nq in (2, 1):
        a.label("L_k1_a%d" % (2 - nq) if nq == 2 else "L_k1_a1")
        if nq == 2:
            a("s_mov_b32 s%d, 0" % S_T2)
        else:
            a("s_add_u32 s%d, s%d, 1" % (S_T2, S_WAVE))
        a("s_lshl_b32 s%d, s%d, 12" % (S_T3, S_T2))
        q_read(a, nq, S_T3)
        a("s_mul_i32 s%d, s%d, %d" % (S_T2, S_T2, 16 * 8192))
        a("s_waitcnt lgkmcnt(0)")
        rares = attn_phase(a, nq)
        attn_epilogue(a, nq, S_T2)
        a("s_branch L_k1_next")
        for (r, b) in rares:
            attn_rare(a, nq, r, b)
    a.label("L_k1_next")
    a("s_add_u32 s%d, s%d, 4" % (S_HEAD, S_HEAD))
    a("s_add_u32 s%d, s%d, 1" % (S_ROUND, S_ROUND))
    a("s_cmp_lt_u32 s%d, 2" % S_ROUND)
    a("s_cbranch_scc1 %s" % rnd)
    a.label(done)
    a("s_endpgm")

def kernel_k2(a, name, opts):
    ntx = opts.get("nt_o", "")
    a.lines.append(".p2align 8")
    a.lines.append(".type %s,@function" % name)
    a.label(name)
    done = "L_k2_done"
    a("s_cmp_ge_u32 s2, 128")
    a("s_cbranch_scc1 %s" % done)
    a("v_and_b32 v%d, 63, v0" % V_LANE)
    a("v_lshrrev_b32 v%d, 6, v0" % V_T)
    a("s_nop 0")
    a("v_readfirstlane_b32 s%d, v%d" % (S_WAVE, V_T))
    a("s_and_b32 s%d, s2, 7" % S_T0)
    a("s_lshr_b32 s%d, s2, 3" % S_T1)
    a("s_lshr_b32 s%d, s%d, 2" % (S_BLK, S_T0))
    a("s_lshr_b32 s%d, s%d, 1" % (S_T2, S_T0))
    a("s_and_b32 s%d, s%d, 1" % (S_T2, S_T2))
    a("s_lshl_b32 s%d, s%d, 2" % (S_T2, S_T2))
    a("s_and_b32 s%d, s%d, 3" % (S_B, S_T1))
    a("s_add_u32 s%d, s%d, s%d" % (S_B, S_B, S_T2))
    a("s_and_b32 s%d, s%d, 1" % (S_T2, S_T0))
    a("s_lshl_b32 s%d, s%d, 2" % (S_T2, S_T2))
    a("s_lshr_b32 s%d, s%d, 2" % (S_HEAD, S_T1))
    a("s_add_u32 s%d, s%d, s%d" % (S_HEAD, S_HEAD, S_T2))
    a("s_lshl_b32 s%d, s%d, 2" % (S_ROT, S_T1))
    a("s_and_b32 s%d, s%d, 63" % (S_ROT, S_ROT))
    a("s_mul_i32 s%d, s%d, 40" % (S_T0, S_BLK))
    a("s_add_u32 s%d, s0, s%d" % (S_PTR2, S_T0))
    a("s_addc_u32 s%d, s1, 0" % (S_PTR2 + 1))
    a("s_load_dwordx2 s[%d:%d], s[%d:%d], 32" % (S_PTR, S_PTR + 1, S_PTR2, S_PTR2 + 1))
    a("s_load_dwordx2 s[%d:%d], s[0:1], 96" % (S_WS, S_WS + 1))
    a("s_load_dwordx2 s[%d:%d], s[0:1], 80" % (S_OUT, S_OUT + 1))
    gemm_setup_lane_regs(a, 8192, 2048)
    a("s_waitcnt lgkmcnt(0)")
    a("s_mul_i32 s%d, s%d, %d" % (S_T0, S_BLK, 1152 * 8192))
    a("s_mul_i32 s%d, s%d, %d" % (S_T1, S_B, 144 * 8192))
    a("s_add_u32 s%d, s%d, s%d" % (S_T0, S_T0, S_T1))
    a("s_add_u32 s%d, s%d, s%d" % (SRD_X, S_WS, S_T0))
    a("s_addc_u32 s%d, s%d, 0" % (SRD_X + 1, S_WS + 1))
    a("s_mov_b32 s%d, %d" % (SRD_X + 2, 144 * 8192))
    a("s_mov_b32 s%d, 0x20000" % (SRD_X + 3))
    a("s_lshl_b32 s%d, s%d, 8" % (S_T0, S_HEAD))
    a("s_add_u32 s%d, s%d, s%d" % (SRD_W, S_PTR, S_T0))
    a("s_addc_u32 s%d, s%d, 0" % (SRD_W + 1, S_PTR + 1))
    a("s_sub_u32 s%d, 8388608, s%d" % (SRD_W + 2, S_T0))
    a("s_mov_b32 s%d, 0x20000" % (SRD_W + 3))
    a("s_mul_i32 s%d, s%d, %d" % (S_T0, S_B, 144 * 4096))
    a("s_lshl_b32 s%d, s%d, 11" % (S_T1, S_BLK))
    a("s_add_u32 s%d, s%d, s%d" % (S_T0, S_T0, S_T1))
    a("s_lshl_b32 s%d, s%d, 8" % (S_T1, S_HEAD))
    a("s_add_u32 s%d, s%d, s%d" % (S_T0, S_T0, S_T1))
    a("s_add_u32 s%d, s%d, s%d" % (SRD_O, S_OUT, S_T0))
    a("s_addc_u32 s%d, s%d, 0" % (SRD_O + 1, S_OUT + 1))
    a("s_mov_b32 s%d, %d" % (SRD_O + 2, 143 * 4096 + 256))
    a("s_mov_b32 s%d, 0x20000" % (SRD_O + 3))
    a("s_mov_b32 s%d, s%d" % (S_KIDX, S_ROT))
    a("s_cmp_ge_u32 s%d, 4" % S_WAVE)
    a("s_cbranch_scc1 L_k2_g1")
    for cls in range(2):
        a.label("L_k2_g%d" % cls)
        nq = 5 if cls == 0 else 4
        jb = 0 if cls == 0 else 5
        gemm_setup_dma(a, cls, 8192, 2048)
        gemm_zero_acc(a, cls)
        gemm_issue(a, cls, BUF[0], 8192, 2048, 64, 128, 64 * 2048, ntx)
        gemm_issue(a, cls, BUF[1], 8192, 2048, 64, 128, 64 * 2048, ntx)
        NP = 4 if cls == 0 else 5
        loop = a.newlabel("k2loop")
        a("s_mov_b32 s%d, 0" % S_CNT)
        a.label(loop)
        for u in range(3):
            a("s_waitcnt vmcnt(%d)" % NP)
            a("s_barrier")
            gemm_issue(a, cls, BUF[(u + 2) % 3], 8192, 2048, 64, 128, 64 * 2048, ntx)
            gemm_compute(a, cls, u)
        a("s_add_u32 s%d, s%d, 1" % (S_CNT, S_CNT))
        a("s_cmp_lt_u32 s%d, 20" % S_CNT)
        a("s_cbranch_scc1 %s" % loop)
        for s in range(60, 64):
            a("s_waitcnt vmcnt(%d)" % (NP if s + 1 < 64 else 0))
            a("s_barrier")
            if s + 2 < 64:
                gemm_issue(a, cls, BUF[(s + 2) % 3], 8192, 2048, 64, 128, 64 * 2048, ntx)
            gemm_compute(a, cls, s % 3)
        T = V_T
        a("v_lshrrev_b32 v%d, 4, v%d" % (T, V_LANE))
        a("v_and_b32 v%d, 15, v%d" % (T + 1, V_LANE))
        a("v_lshlrev_b32 v%d, 3, v%d" % (T + 2, T))
        a("v_lshl_add_u32 v%d, v%d, 12, v%d" % (T + 2, T + 1, T + 2))
        a("s_and_b32 s%d, s%d, 3" % (S_T0, S_WAVE))
        a("s_lshl_b32 s%d, s%d, 6" % (S_T0, S_T0))
        a("v_add_u32 v%d, s%d, v%d" % (T + 2, S_T0, T + 2))
        a("s_nop 7")
        for j in range(nq):
            a("s_mov_b32 s%d, %d" % (S_T1, (jb + j) * 16 * 4096))
            for nt in range(2):
                acc = G_ACC + (nt * 5 + j) * 4
                a("v_cvt_pk_bf16_f32 v%d, v%d, v%d" % (acc, acc, acc + 1))
                a("v_cvt_pk_bf16_f32 v%d, v%d, v%d" % (acc + 1, acc + 2, acc + 3))
                a("buffer_store_dwordx2 %s, v%d, s[%d:%d], s%d offen offset:%d" % (vr(acc, 2), T + 2, SRD_O, SRD_O + 3, S_T1, nt * 32))
        if cls == 0:
            a("s_branch %s" % done)
    a.label(done)
    a("s_endpgm")

def descriptor(name, vgpr, sgpr):
    return """.section .rodata,"a"
.p2align 6
.amdhsa_kernel %s
  .amdhsa_next_free_vgpr %d
  .amdhsa_next_free_sgpr %d
  .amdhsa_accum_offset %d
  .amdhsa_group_segment_fixed_size 0
  .amdhsa_kernarg_size 104
  .amdhsa_user_sgpr_count 2
  .amdhsa_user_sgpr_kernarg_segment_ptr 1
  .amdhsa_system_sgpr_workgroup_id_x 1
.end_amdhsa_kernel
""" % (name, vgpr, sgpr, vgpr)

def build(opts):
    a = Asm()
    k1 = NAME + "_kernel"
    k2 = "oproj_kernel"
    hdr = []
    hdr.append("; @launch kernel=%s grid=(256,1,1) block=(512,1,1) lds=163840" % k1)
    hdr.append("; @launch kernel=%s grid=(128,1,1) block=(512,1,1) lds=%d" % (k2, 3 * STAGE))
    hdr.append('.amdgcn_target "amdgcn-amd-amdhsa--gfx950"')
    hdr.append(".text")
    hdr.append(".globl %s" % k1)
    hdr.append(".globl %s" % k2)
    kernel_k1(a, k1, opts)
    kernel_k2(a, k2, opts)
    txt = "\n".join(hdr) + "\n" + "\n".join(a.lines) + "\n"
    txt += descriptor(k1, 240, 64)
    txt += ".text\n" if False else ""
    txt += descriptor(k2, 240, 64)
    return txt

if __name__ == "__main__":
    out = sys.argv[1] if len(sys.argv) > 1 else "cdna_kernels/%s.s" % NAME
    opts = {}
    for o in sys.argv[2:]:
        k, v = o.split("=")
        opts[k] = v
    open(out, "w").write(build(opts))
    print("wrote", out)
```

```python
import sys, struct

NAME = "concat_heads__mha_block_cached__gqa_block_cached__near_ridge"

def f32bits(x):
    return struct.unpack("<I", struct.pack("<f", x))[0]

class Asm:
    def __init__(self):
        self.lines = []
        self.uid = 0
    def __call__(self, s):
        self.lines.append("    " + s)
    def label(self, l):
        self.lines.append(l + ":")
    def c(self, s):
        self.lines.append("    ; " + s)
    def newlabel(self, p):
        self.uid += 1
        return "L_%s_%d" % (p, self.uid)

def vr(b, n=1):
    return "v%d" % b if n == 1 else "v[%d:%d]" % (b, b + n - 1)

STAGE = 34816
XT = 18432
BUF = [0, STAGE, 2 * STAGE, 3 * STAGE]
QB = STAGE
RING = 32768
WS_PART = 32 << 20
WS_FLAG = 48 << 20
PROF_OFF = 64 << 20
V_LANE = 1
V_AD = 2
V_XA = 2; V_WA = 6
V_KA = 2; V_VA = 6
V_T = 14
V_MX = 20
V_PROF = 21
V_CORR = 22
V_ONES = 24
A_O = 28
A_L = 60
A_CI = 64
A_Q = 68
A_K = 84
A_V = 116
A_S = 148
A_P = 164
G_ACC = 28
G_XF = 68
G_WF = 108
L_OFF = 2
S_WAVE = 3
SRD_X = 4
SRD_W = 8
SRD_KV = 12
SRD_O = 20
S_BLK = 24; S_B = 25; S_HEAD = 26; S_ROUND = 27
S_C = 28; S_THR = 29; S_LO = 30; S_ROT = 31
S_PTR = 32
S_WS = 40
S_KOFF = 42
S_KIDX = 43
S_T0 = 44; S_T1 = 45
S_ROWB = 46
S_LDSB = 47
S_KVOFF = 48
S_CNT = 49
S_KVL = 50
S_T2 = 51; S_T3 = 52
S_QROW = 53
S_OUT = 54
S_PTR2 = 56
S_STAMP = 58
S_PROF = 60
SRD_F = 64
SRD_P = 68
S_RET = 72
S_KVB = 74

OPTS = {}

def prof_setup(a, base=0):
    if not OPTS.get("prof"): return
    a("s_add_u32 s%d, s%d, %d" % (S_PROF, S_WS, PROF_OFF + base))
    a("s_addc_u32 s%d, s%d, 0" % (S_PROF + 1, S_WS + 1))
    a("s_mov_b32 s%d, %d" % (S_PROF + 2, 256 * 16 * 64 * 4))
    a("s_mov_b32 s%d, 0x20000" % (S_PROF + 3))
    a("s_lshl_b32 s%d, s2, 4" % S_T0)
    a("s_add_u32 s%d, s%d, s%d" % (S_T0, S_T0, S_WAVE))
    a("s_lshl_b32 s%d, s%d, 8" % (S_T0, S_T0))
    a("v_mov_b32 v%d, s%d" % (V_PROF, S_T0))
def prof(a, idx, dyn=None, real=False):
    if not OPTS.get("prof"): return
    a("%s s[%d:%d]" % ("s_memrealtime" if real else "s_memtime", S_STAMP, S_STAMP + 1))
    a("s_waitcnt lgkmcnt(0)")
    a("v_mov_b32 v%d, s%d" % (V_T + 5, S_STAMP))
    if dyn is not None:
        a("s_lshl_b32 s%d, s%d, 6" % (S_STAMP + 1, dyn))
    else:
        a("s_mov_b32 s%d, 0" % (S_STAMP + 1))
    a("s_mov_b64 exec, 1")
    a("buffer_store_dword v%d, v%d, s[%d:%d], s%d offen offset:%d" % (V_T + 5, V_PROF, S_PROF, S_PROF + 3, S_STAMP + 1, idx * 4))
    a("s_mov_b64 exec, -1")

def weave(a, ms, fill, lead=0):
    k = 0
    while k < min(lead, len(fill)):
        for ins in fill[k]: a(ins)
        k += 1
    n = len(ms)
    rest = len(fill) - k
    base = k
    for i, m in enumerate(ms):
        a(m)
        want = base + ((i + 1) * rest + n - 1) // n
        while k < min(want, len(fill)):
            for ins in fill[k]: a(ins)
            k += 1
    while k < len(fill):
        for ins in fill[k]: a(ins)
        k += 1

class GemmC:
    def __init__(self, cls, NS, NBUF):
        self.cls = cls; self.NS = NS; self.NBUF = NBUF
        self.nq = 5 if cls == 0 else 4
        self.jb = 0 if cls == 0 else 5
    def read_list(self, bi, ss):
        st = bi >> 1
        boff = BUF[bi & 1]
        l = []
        for nt in range(2):
            for hh in range(2):
                l.append("ds_read_b64_tr_b16 %s, v%d offset:%d" % (vr(G_WF + (ss * 2 + nt) * 4 + 2 * hh, 2), V_WA + 2 * st + nt,
                                                                   boff + XT + ss * 8192 + hh * 1024))
        for j in range(self.nq):
            l.append("ds_read_b128 %s, v%d offset:%d" % (vr(G_XF + (ss * 5 + j) * 4, 4), V_XA + 2 * st + ss, boff + (self.jb + j) * 2048))
        return l
    def mfmas(self, ss):
        l = []
        for j in range(self.nq):
            for nt in range(2):
                acc = vr(G_ACC + (nt * 5 + j) * 4, 4)
                l.append("v_mfma_f32_16x16x32_bf16 %s, %s, %s, %s" % (acc, vr(G_WF + (ss * 2 + nt) * 4, 4), vr(G_XF + (ss * 5 + j) * 4, 4), acc))
        return l
    def stage(self, a, bi, do_p):
        a("s_waitcnt lgkmcnt(0)")
        rd = self.read_list(bi, 1)
        weave(a, self.mfmas(0), [rd[i:i + 2] for i in range(0, len(rd), 2)][:], 0) if False else None
        ms = self.mfmas(0)
        fill = [rd[i:i + 2] for i in range(0, len(rd), 2)]
        k = 0
        for i, m in enumerate(ms):
            a(m)
            if k < len(fill):
                for ins in fill[k]: a(ins)
                k += 1
        a("s_waitcnt lgkmcnt(0)")
        fill = []
        if do_p:
            a("s_barrier")
            rd = self.read_list((bi + 1) % self.NBUF, 0)
            fill = [rd[i:i + 2] for i in range(0, len(rd), 2)]
        k = 0
        for i, m in enumerate(self.mfmas(1)):
            a(m)
            if k < len(fill):
                for ins in fill[k]: a(ins)
                k += 1
    def zero_acc(self, a):
        for nt in range(2):
            for j in range(self.nq):
                for r in range(4):
                    a("v_mov_b32 v%d, 0" % (G_ACC + (nt * 5 + j) * 4 + r))
    def main(self, a):
        NB = self.NBUF; NS = self.NS
        nloop = (NS - 1) // NB
        loop = a.newlabel("gloop")
        a("s_mov_b32 s%d, 0" % S_CNT)
        a.label(loop)
        for u in range(NB):
            self.stage(a, u, True)
        a("s_add_u32 s%d, s%d, 1" % (S_CNT, S_CNT))
        a("s_cmp_lt_u32 s%d, %d" % (S_CNT, nloop))
        a("s_cbranch_scc1 %s" % loop)
        for s in range(nloop * NB, NS):
            self.stage(a, s % NB, s + 1 < NS)

def gemm_lane_regs(a):
    T = V_T
    a("v_lshrrev_b32 v%d, 4, v%d" % (T, V_LANE))
    a("v_and_b32 v%d, 15, v%d" % (T + 1, V_LANE))
    a("v_lshrrev_b32 v%d, 1, v%d" % (T + 2, T + 1))
    a("v_xor_b32 v%d, v%d, v%d" % (T + 2, T + 2, T))
    a("v_lshlrev_b32 v%d, 4, v%d" % (T + 2, T + 2))
    a("v_lshl_add_u32 v%d, v%d, 7, v%d" % (V_XA + 0, T + 1, T + 2))
    a("v_xor_b32 v%d, 64, v%d" % (V_XA + 1, V_XA + 0))
    a("v_add_u32 v%d, %d, v%d" % (V_XA + 2, BUF[2], V_XA + 0))
    a("v_add_u32 v%d, %d, v%d" % (V_XA + 3, BUF[2], V_XA + 1))
    a("v_lshrrev_b32 v%d, 2, v%d" % (T + 2, T + 1))
    a("v_and_b32 v%d, 1, v%d" % (T + 3, T))
    a("v_lshl_add_u32 v%d, v%d, 2, v%d" % (T + 3, T + 3, T + 2))
    a("s_and_b32 s%d, s%d, 3" % (S_T0, S_WAVE))
    a("s_lshl_b32 s%d, s%d, 1" % (S_T0, S_T0))
    a("v_xor_b32 v%d, s%d, v%d" % (T + 4, S_T0, T + 3))
    a("v_lshlrev_b32 v%d, 5, v%d" % (T + 4, T + 4))
    a("v_lshl_add_u32 v%d, v%d, 11, v%d" % (T + 4, T, T + 4))
    a("v_lshl_add_u32 v%d, v%d, 8, v%d" % (T + 4, T + 2, T + 4))
    a("v_and_b32 v%d, 3, v%d" % (T + 5, T + 1))
    a("v_lshl_add_u32 v%d, v%d, 3, v%d" % (V_WA + 0, T + 5, T + 4))
    a("v_xor_b32 v%d, 32, v%d" % (V_WA + 1, V_WA + 0))
    a("v_add_u32 v%d, %d, v%d" % (V_WA + 2, BUF[2], V_WA + 0))
    a("v_add_u32 v%d, %d, v%d" % (V_WA + 3, BUF[2], V_WA + 1))

class LoadW:
    def __init__(self, NS, WRS, ntf=""):
        self.NS = NS; self.WRS = WRS; self.ntf = ntf; self.NP = 8
    def setup(self, a, half_sgpr):
        T = V_T
        a("v_lshrrev_b32 v%d, 4, v%d" % (T, V_LANE))
        a("v_and_b32 v%d, 15, v%d" % (T + 1, V_LANE))
        a("v_lshlrev_b32 v%d, 1, v%d" % (T + 2, T))
        a("v_xor_b32 v%d, v%d, v%d" % (T + 2, T + 2, T + 1))
        a("v_lshlrev_b32 v%d, 4, v%d" % (T + 2, T + 2))
        a("v_mul_u32_u24 v%d, %d, v%d" % (T + 3, self.WRS, T))
        a("v_add_u32 v%d, v%d, v%d" % (L_OFF, T + 2, T + 3))
        a("v_xor_b32 v%d, 128, v%d" % (L_OFF + 1, L_OFF))
        a("s_mul_i32 s%d, s%d, %d" % (S_ROWB, half_sgpr, 32 * self.WRS))
        a("s_lshl_b32 s%d, s%d, 13" % (S_LDSB, half_sgpr))
    def issue(self, a, bi):
        buf = BUF[bi]
        a("s_mul_i32 s%d, s%d, %d" % (S_KOFF, S_KIDX, 64 * self.WRS))
        a("s_add_u32 s%d, s%d, s%d" % (S_KOFF, S_KOFF, S_ROWB))
        for i in range(8):
            a("s_add_u32 m0, s%d, %d" % (S_LDSB, buf + XT + i * 1024))
            a("s_add_u32 s%d, s%d, %d" % (S_T0, S_KOFF, i * 4 * self.WRS))
            a("buffer_load_dwordx4 v%d, s[%d:%d], s%d offen%s lds" % (L_OFF + ((i >> 1) & 1), SRD_W, SRD_W + 3, S_T0, self.ntf))
        a("s_add_u32 s%d, s%d, 1" % (S_KIDX, S_KIDX))
        a("s_and_b32 s%d, s%d, %d" % (S_KIDX, S_KIDX, self.NS - 1))

class LoadX:
    def __init__(self, NS, XRS, npieces, ntf=""):
        self.NS = NS; self.XRS = XRS; self.ntf = ntf; self.NP = npieces
    def setup(self, a, p0_sgpr):
        T = V_T
        a("v_lshrrev_b32 v%d, 3, v%d" % (T, V_LANE))
        a("v_and_b32 v%d, 7, v%d" % (T + 1, V_LANE))
        a("v_lshrrev_b32 v%d, 1, v%d" % (T + 2, T))
        a("s_lshl_b32 s%d, s%d, 2" % (S_T1, p0_sgpr))
        a("v_add_u32 v%d, s%d, v%d" % (T + 2, S_T1, T + 2))
        a("v_and_b32 v%d, 7, v%d" % (T + 2, T + 2))
        a("v_xor_b32 v%d, v%d, v%d" % (T + 2, T + 2, T + 1))
        a("v_lshlrev_b32 v%d, 4, v%d" % (T + 2, T + 2))
        a("v_mul_u32_u24 v%d, %d, v%d" % (T + 3, self.XRS, T))
        a("v_add_u32 v%d, v%d, v%d" % (L_OFF, T + 2, T + 3))
        a("v_xor_b32 v%d, 64, v%d" % (L_OFF + 1, L_OFF))
        a("s_mul_i32 s%d, s%d, %d" % (S_ROWB, p0_sgpr, 8 * self.XRS))
        a("s_lshl_b32 s%d, s%d, 10" % (S_LDSB, p0_sgpr))
    def issue(self, a, bi):
        buf = BUF[bi]
        a("s_lshl_b32 s%d, s%d, 7" % (S_KOFF, S_KIDX))
        a("s_add_u32 s%d, s%d, s%d" % (S_KOFF, S_KOFF, S_ROWB))
        for i in range(self.NP):
            a("s_add_u32 m0, s%d, %d" % (S_LDSB, buf + i * 1024))
            a("s_add_u32 s%d, s%d, %d" % (S_T0, S_KOFF, i * 8 * self.XRS))
            a("buffer_load_dwordx4 v%d, s[%d:%d], s%d offen%s lds" % (L_OFF + (i & 1), SRD_X, SRD_X + 3, S_T0, self.ntf))
        a("s_add_u32 s%d, s%d, 1" % (S_KIDX, S_KIDX))
        a("s_and_b32 s%d, s%d, %d" % (S_KIDX, S_KIDX, self.NS - 1))

def loader_gemm(a, ld, NS, NBUF):
    NP = ld.NP
    nloop = (NS - NBUF) // NBUF
    loop = a.newlabel("lloop")
    a("s_mov_b32 s%d, 0" % S_CNT)
    a.label(loop)
    for u in range(NBUF):
        a("s_waitcnt vmcnt(%d)" % min(63, (NBUF - 2) * NP))
        a("s_barrier")
        ld.issue(a, u)
    a("s_add_u32 s%d, s%d, 1" % (S_CNT, S_CNT))
    a("s_cmp_lt_u32 s%d, %d" % (S_CNT, nloop))
    a("s_cbranch_scc1 %s" % loop)
    for s in range(nloop * NBUF, NS - 1):
        last_issued = min(NS - 1, s - 1 + NBUF)
        vm = max(0, last_issued - (s + 1)) * NP
        a("s_waitcnt vmcnt(%d)" % min(63, vm))
        a("s_barrier")
        if s + NBUF < NS:
            ld.issue(a, s % NBUF)

def kv_lane_regs(a, isv_sgpr):
    T = V_T
    a("v_lshrrev_b32 v%d, 4, v%d" % (T, V_LANE))
    a("v_and_b32 v%d, 15, v%d" % (T + 1, V_LANE))
    a("s_cmp_eq_u32 s%d, 0" % isv_sgpr)
    a("s_cselect_b64 vcc, -1, 0")
    for q in range(4):
        a("v_add_u32 v%d, %d, v%d" % (T + 2, 4 * q, T))
        a("v_and_b32 v%d, 7, v%d" % (T + 3, T + 2))
        a("v_lshlrev_b32 v%d, 1, v%d" % (T + 3, T + 3))
        a("v_cndmask_b32 v%d, v%d, v%d, vcc" % (T + 3, T + 3, T + 2))
        a("v_xor_b32 v%d, v%d, v%d" % (T + 3, T + 3, T + 1))
        a("v_lshlrev_b32 v%d, 4, v%d" % (T + 3, T + 3))
        a("v_lshl_add_u32 v%d, v%d, 8, v%d" % (L_OFF + 2 + q, T, T + 3))

def kv_issue(a, slot, ntf):
    for p in range(8):
        a("s_add_u32 m0, s%d, %d" % (S_KVL, RING + slot * 16384 + p * 1024))
        a("s_add_u32 s%d, s%d, %d" % (S_T0, S_KVOFF, p * 1024))
        a("buffer_load_dwordx4 v%d, s[%d:%d], s%d offen%s lds" % (L_OFF + 2 + (p & 3), SRD_KV, SRD_KV + 3, S_T0, ntf))
    a("s_add_u32 s%d, s%d, 8192" % (S_KVOFF, S_KVOFF))

def attn_lane_regs(a):
    T = V_T
    a("v_lshrrev_b32 v%d, 4, v%d" % (T, V_LANE))
    a("v_and_b32 v%d, 15, v%d" % (T + 1, V_LANE))
    a("v_xor_b32 v%d, v%d, v%d" % (T + 2, T, T + 1))
    a("v_lshlrev_b32 v%d, 4, v%d" % (T + 2, T + 2))
    a("v_lshl_add_u32 v%d, v%d, 8, v%d" % (T + 2, T + 1, T + 2))
    a("v_add_u32 v%d, %d, v%d" % (V_KA, RING + 65536, T + 2))
    for ks in range(1, 4):
        a("v_xor_b32 v%d, %d, v%d" % (V_KA + ks, ks * 64, V_KA))
    a("v_lshrrev_b32 v%d, 2, v%d" % (T + 2, T + 1))
    a("v_and_b32 v%d, 1, v%d" % (T + 3, T))
    a("v_lshl_add_u32 v%d, v%d, 2, v%d" % (T + 3, T + 3, T + 2))
    a("v_lshlrev_b32 v%d, 5, v%d" % (T + 3, T + 3))
    a("v_lshl_add_u32 v%d, v%d, 10, v%d" % (T + 3, T, T + 3))
    a("v_lshl_add_u32 v%d, v%d, 8, v%d" % (T + 3, T + 2, T + 3))
    a("v_and_b32 v%d, 3, v%d" % (T + 4, T + 1))
    a("v_lshl_add_u32 v%d, v%d, 3, v%d" % (T + 3, T + 4, T + 3))
    a("v_add_u32 v%d, %d, v%d" % (V_VA, RING + 65536 + 8192, T + 3))
    for dt in range(1, 8):
        a("v_xor_b32 v%d, %d, v%d" % (V_VA + dt, dt * 32, V_VA))

def q_write(a, g):
    T = V_T
    a("v_lshrrev_b32 v%d, 4, v%d" % (T, V_LANE))
    a("v_and_b32 v%d, 15, v%d" % (T + 1, V_LANE))
    a("s_and_b32 s%d, s%d, 3" % (S_T0, S_WAVE))
    a("s_lshl_b32 s%d, s%d, 2" % (S_T0, S_T0))
    a("v_lshrrev_b32 v%d, 1, v%d" % (T + 2, T))
    a("v_add_u32 v%d, s%d, v%d" % (T + 2, S_T0, T + 2))
    a("v_xor_b32 v%d, v%d, v%d" % (T + 2, T + 2, T + 1))
    a("v_lshlrev_b32 v%d, 4, v%d" % (T + 2, T + 2))
    a("v_lshl_add_u32 v%d, v%d, 8, v%d" % (T + 2, T + 1, T + 2))
    a("v_and_b32 v%d, 1, v%d" % (T + 3, T))
    a("v_lshl_add_u32 v%d, v%d, 3, v%d" % (T + 2, T + 3, T + 2))
    a("v_add_u32 v%d, %d, v%d" % (T + 2, QB, T + 2))
    a("v_xor_b32 v%d, 32, v%d" % (T + 3, T + 2))
    a("s_nop 7")
    for nt in range(2):
        for j in range(g.nq):
            acc = G_ACC + (nt * 5 + j) * 4
            for r in range(4):
                a("v_mul_f32 v%d, s%d, v%d" % (acc + r, S_C, acc + r))
            a("v_cvt_pk_bf16_f32 v%d, v%d, v%d" % (acc, acc, acc + 1))
            a("v_cvt_pk_bf16_f32 v%d, v%d, v%d" % (acc + 1, acc + 2, acc + 3))
            a("ds_write_b64 v%d, %s offset:%d" % (T + 2 + nt, vr(acc, 2), (g.jb + j) * 4096))

def q_read(a):
    T = V_T
    a("s_lshl_b32 s%d, s%d, 12" % (S_T3, S_WAVE))
    a("s_add_u32 s%d, s%d, %d" % (S_T3, S_T3, (QB - RING - 65536) & 0xffffffff))
    for ks in range(4):
        a("v_add_u32 v%d, s%d, v%d" % (T + ks, S_T3, V_KA + ks))
    for ks in range(4):
        a("ds_read_b128 %s, v%d" % (vr(A_Q + ks * 4, 4), T + ks))

ADBG = ""
def k_reads(slot):
    so = (slot & 3) * 16384
    return ["ds_read_b128 %s, v%d offset:%d" % (vr(A_K + (t * 4 + ks) * 4, 4), V_KA + ks, so + t * 4096) for ks in range(4) for t in range(2)]
def v_reads(slot):
    so = (slot & 3) * 16384
    return ["ds_read_b64_tr_b16 %s, v%d offset:%d" % (vr(A_V + dt * 4 + 2 * hh, 2), V_VA + dt, so + hh * 4096) for dt in range(8) for hh in range(2)]
def qk_mfmas(sb):
    l = []
    for ks in range(4):
        for t in range(2):
            s = vr(A_S + sb * 8 + t * 4, 4)
            l.append("v_mfma_f32_16x16x32_bf16 %s, %s, %s, %s" % (s, vr(A_K + (t * 4 + ks) * 4, 4), vr(A_Q + ks * 4, 4), vr(A_CI, 4) if ks == 0 else s))
    return l
def pv_mfmas():
    l = []
    for dt in range(8):
        o = vr(A_O + dt * 4, 4)
        l.append("v_mfma_f32_16x16x32_bf16 %s, %s, %s, %s" % (o, vr(A_V + dt * 4, 4), vr(A_P, 4), o))
    l.insert(4, "v_mfma_f32_16x16x32_bf16 %s, %s, %s, %s" % (vr(A_L, 4), vr(V_ONES, 4), vr(A_P, 4), vr(A_L, 4)))
    return l
def toggle(regs, n, delta):
    return ["v_add_u32 v%d, 0x%x, v%d" % (regs + i, delta & 0xffffffff, regs + i) for i in range(n)]

def attn_step(a, u, stubs):
    sb = u & 1
    S = A_S + sb * 8
    a.c("======== attn step u=%d" % u)
    if u == 3:
        for i in toggle(V_VA, 8, -65536): a(i)
    if u == 7:
        for i in toggle(V_VA, 8, 65536): a(i)
    a("s_waitcnt lgkmcnt(0)")
    if "fine" in ADBG:
        a("s_sub_u32 s82, s78, s76"); a("s_add_u32 s84, s84, s82")
        a("s_sub_u32 s82, s80, s78"); a("s_add_u32 s85, s85, s82")
        a("s_mov_b32 s83, s80")
        a("s_memtime s[76:77]")
    vl = v_reads((u + 5) % 8)
    if "noread" in ADBG: vl = ["s_nop 0"] * 16
    m = V_MX
    pre = ["v_max3_f32 v%d, v%d, v%d, v%d" % (m, S, S + 1, S + 2),
           "v_max3_f32 v%d, v%d, v%d, v%d" % (m, m, S + 3, S + 4),
           "v_max3_f32 v%d, v%d, v%d, v%d" % (m, m, S + 5, S + 6),
           "v_max_f32 v%d, v%d, v%d" % (m, m, S + 7),
           "v_cmp_lt_f32 vcc, s%d, v%d" % (S_THR, m)]
    post = ["v_exp_f32 v%d, v%d" % (S + i, S + i) for i in range(8)]
    post.append("s_nop 0")
    post += ["v_cvt_pk_bf16_f32 v%d, v%d, v%d" % (A_P + i, S + 2 * i, S + 2 * i + 1) for i in range(4)]
    qk = qk_mfmas(sb ^ 1)
    if "nomfma" in ADBG: qk = ["s_nop 0"] * 8
    if "novalu" in ADBG:
        pre = ["s_nop 0"] * 4 + ["v_cmp_lt_f32 vcc, v%d, v%d" % (m, m)]; post = ["s_nop 0"]
    a(qk[0]); a(pre[0]); a(vl[0]); a(vl[1])
    a(qk[1]); a(pre[1]); a(vl[2]); a(vl[3])
    a(qk[2]); a(pre[2]); a(vl[4]); a(pre[3]); a(vl[5])
    a(pre[4])
    rare = a.newlabel("rare"); back = a.newlabel("back")
    a("s_cbranch_vccnz %s" % rare)
    a.label(back)
    stubs.append((rare, back, sb))
    rest_v = vl[6:]
    fill = []
    for i, p in enumerate(post):
        g = [p]
        if i < len(rest_v): g.append(rest_v[i])
        fill.append(g)
    weave(a, qk[3:], fill)
    if "fine" in ADBG:
        a("s_memtime s[78:79]")
    a("s_waitcnt lgkmcnt(0)")
    if "fine" in ADBG:
        a("s_sub_u32 s82, s76, s83"); a("s_add_u32 s86, s86, s82")
        a("s_memtime s[88:89]")
    a("s_barrier")
    if "fine" in ADBG:
        a("s_memtime s[80:81]")
        a("s_waitcnt lgkmcnt(0)")
        a("s_sub_u32 s82, s88, s78"); a("s_add_u32 s87, s87, s82")
    tg = []
    if u == 1: tg = toggle(V_KA, 4, -65536)
    if u == 5: tg = toggle(V_KA, 4, 65536)
    for i in tg: a(i)
    kr = k_reads((u + 7) % 8)
    if "noread" in ADBG: kr = []
    pv = pv_mfmas()
    if "nomfma" in ADBG: pv = ["s_nop 0"] * 9
    for i, mm in enumerate(pv):
        a(mm)
        if i < len(kr): a(kr[i])

def attn_rare_sub(a, sb, label):
    a.label(label)
    T = V_T
    S = A_S + sb * 8
    m = V_MX
    for i in range(8):
        a("v_sub_f32 v%d, v%d, v%d" % (S + i, S + i, V_CORR))
    a("v_max3_f32 v%d, v%d, v%d, v%d" % (m, S, S + 1, S + 2))
    a("v_max3_f32 v%d, v%d, v%d, v%d" % (m, m, S + 3, S + 4))
    a("v_max3_f32 v%d, v%d, v%d, v%d" % (m, m, S + 5, S + 6))
    a("v_max_f32 v%d, v%d, v%d" % (m, m, S + 7))
    a("v_xor_b32 v%d, 16, v%d" % (T + 1, V_LANE))
    a("v_lshlrev_b32 v%d, 2, v%d" % (T + 1, T + 1))
    a("ds_bpermute_b32 v%d, v%d, v%d" % (T, T + 1, m))
    a("s_waitcnt lgkmcnt(0)")
    a("v_max_f32 v%d, v%d, v%d" % (m, m, T))
    a("v_xor_b32 v%d, 32, v%d" % (T + 1, V_LANE))
    a("v_lshlrev_b32 v%d, 2, v%d" % (T + 1, T + 1))
    a("ds_bpermute_b32 v%d, v%d, v%d" % (T, T + 1, m))
    a("s_waitcnt lgkmcnt(0)")
    a("v_max_f32 v%d, v%d, v%d" % (m, m, T))
    a("v_cmp_lt_f32 vcc, s%d, v%d" % (S_LO, m))
    a("s_nop 1")
    a("v_cndmask_b32 v%d, 0, v%d, vcc" % (m, m))
    for i in range(8):
        a("v_sub_f32 v%d, v%d, v%d" % (S + i, S + i, m))
    for i in range(4):
        a("v_sub_f32 v%d, v%d, v%d" % (A_CI + i, A_CI + i, m))
    a("v_mov_b32 v%d, v%d" % (V_CORR, m))
    a("v_max_f32 v%d, 0, v%d" % (T, m))
    a("v_sub_f32 v%d, 0, v%d" % (T, T))
    a("v_exp_f32 v%d, v%d" % (T, T))
    a("v_cmp_neq_f32 vcc, 0, v%d" % m)
    for i in range(4):
        a("v_mul_f32 v%d, v%d, v%d" % (A_L + i, A_L + i, T))
    for i in range(32):
        a("v_mul_f32 v%d, v%d, v%d" % (A_O + i, A_O + i, T))
    a("s_cmp_lg_u64 vcc, 0")
    a("s_mov_b32 s%d, 0x%08x" % (S_THR, f32bits(8.0)))
    a("s_mov_b32 s%d, s%d" % (S_LO, S_THR))
    a("s_cselect_b32 s%d, 0xff800000, s%d" % (S_THR, S_THR))
    a("s_setpc_b64 s[%d:%d]" % (S_RET, S_RET + 1))

def attn_epilogue(a, stf):
    T = V_T
    a("v_lshrrev_b32 v%d, 4, v%d" % (T, V_LANE))
    a("v_and_b32 v%d, 15, v%d" % (T + 1, V_LANE))
    a("v_lshlrev_b32 v%d, 3, v%d" % (T, T))
    a("v_lshl_add_u32 v%d, v%d, 13, v%d" % (T + 1, T + 1, T))
    a("s_mul_i32 s%d, s%d, %d" % (S_T0, S_WAVE, 16 * 8192))
    a("s_nop 4")
    a("v_rcp_f32 v%d, v%d" % (T + 2, A_L))
    a("s_nop 0")
    for dt in range(8):
        o = A_O + dt * 4
        for r in range(4):
            a("v_mul_f32 v%d, v%d, v%d" % (o + r, o + r, T + 2))
        a("v_cvt_pk_bf16_f32 v%d, v%d, v%d" % (o, o, o + 1))
        a("v_cvt_pk_bf16_f32 v%d, v%d, v%d" % (o + 1, o + 2, o + 3))
        a("buffer_store_dwordx2 %s, v%d, s[%d:%d], s%d offen offset:%d%s" % (vr(o, 2), T + 1, SRD_O, SRD_O + 3, S_T0, dt * 32, stf))

def srd_w(a):
    a("s_lshl_b32 s%d, s%d, 8" % (S_T0, S_HEAD))
    a("s_add_u32 s%d, s%d, s%d" % (SRD_W, S_PTR + 6, S_T0))
    a("s_addc_u32 s%d, s%d, 0" % (SRD_W + 1, S_PTR + 7))
    a("s_sub_u32 s%d, 8388608, s%d" % (SRD_W + 2, S_T0))
    a("s_mov_b32 s%d, 0x20000" % (SRD_W + 3))
def srd_kv(a):
    a("s_lshl_b32 s%d, s%d, 5" % (S_T0, S_B))
    a("s_add_u32 s%d, s%d, s%d" % (S_T0, S_T0, S_HEAD))
    a("s_lshl_b32 s%d, s%d, 18" % (S_T0, S_T0))
    a("s_add_u32 s%d, s%d, s%d" % (SRD_KV, S_KVB, S_T0))
    a("s_addc_u32 s%d, s%d, 0" % (SRD_KV + 1, S_KVB + 1))
    a("s_mov_b32 s%d, 262144" % (SRD_KV + 2))
    a("s_mov_b32 s%d, 0x20000" % (SRD_KV + 3))
def srd_o(a):
    a("s_mul_i32 s%d, s%d, %d" % (S_T0, S_BLK, 1152 * 8192))
    a("s_mul_i32 s%d, s%d, %d" % (S_T1, S_B, 144 * 8192))
    a("s_add_u32 s%d, s%d, s%d" % (S_T0, S_T0, S_T1))
    a("s_lshl_b32 s%d, s%d, 8" % (S_T1, S_HEAD))
    a("s_add_u32 s%d, s%d, s%d" % (S_T0, S_T0, S_T1))
    a("s_add_u32 s%d, s%d, s%d" % (SRD_O, S_WS, S_T0))
    a("s_addc_u32 s%d, s%d, 0" % (SRD_O + 1, S_WS + 1))
    a("s_mov_b32 s%d, %d" % (SRD_O + 2, 143 * 8192 + 256))
    a("s_mov_b32 s%d, 0x20000" % (SRD_O + 3))

def kernel_k1(a, name):
    global ADBG
    ADBG = OPTS.get("adbg", "")
    opts = OPTS
    ntx = opts.get("nt_xw", "")
    ntkv = opts.get("nt_kv", " nt")
    stf = opts.get("st_o", "")
    a.lines.append(".p2align 8")
    a.lines.append(".type %s,@function" % name)
    a.label(name)
    done = "L_k1_done"
    a("s_cmp_ge_u32 s2, 256")
    a("s_cbranch_scc1 %s" % done)
    a("v_and_b32 v%d, 63, v0" % V_LANE)
    a("v_lshrrev_b32 v%d, 6, v0" % V_T)
    a("s_nop 0")
    a("v_readfirstlane_b32 s%d, v%d" % (S_WAVE, V_T))
    a("s_and_b32 s%d, s2, 7" % S_T0)
    a("s_lshr_b32 s%d, s2, 3" % S_T1)
    a("s_lshr_b32 s%d, s%d, 2" % (S_BLK, S_T0))
    a("s_and_b32 s%d, s%d, 3" % (S_T2, S_T0))
    a("s_and_b32 s%d, s%d, 7" % (S_B, S_T1))
    a("s_lshr_b32 s%d, s%d, 3" % (S_T3, S_T1))
    a("s_lshl_b32 s%d, s%d, 3" % (S_HEAD, S_T2))
    a("s_add_u32 s%d, s%d, s%d" % (S_HEAD, S_HEAD, S_T3))
    a("s_lshl_b32 s%d, s%d, 1" % (S_ROT, S_B))
    a("s_lshl_b32 s%d, s%d, 2" % (S_T3, S_T3))
    a("s_add_u32 s%d, s%d, s%d" % (S_ROT, S_ROT, S_T3))
    a("s_and_b32 s%d, s%d, 15" % (S_ROT, S_ROT))
    if opts.get("rot1") == "0":
        a("s_mov_b32 s%d, 0" % S_ROT)
    a("s_mul_i32 s%d, s%d, 40" % (S_T0, S_BLK))
    a("s_add_u32 s%d, s0, s%d" % (S_PTR2, S_T0))
    a("s_addc_u32 s%d, s1, 0" % (S_PTR2 + 1))
    a("s_load_dwordx8 s[%d:%d], s[%d:%d], 0" % (S_PTR, S_PTR + 7, S_PTR2, S_PTR2 + 1))
    a("s_load_dwordx2 s[%d:%d], s[0:1], 96" % (S_WS, S_WS + 1))
    a("s_mov_b32 s%d, 0x%08x" % (S_C, f32bits(128 ** -0.5 * 1.4426950408889634)))
    a("s_mov_b32 s%d, 0" % S_ROUND)
    a("s_waitcnt lgkmcnt(0)")
    prof_setup(a)
    prof(a, 8, None, True)
    prof(a, 9)
    a("s_cmp_ge_u32 s%d, 9" % S_WAVE)
    a("s_cbranch_scc1 L_k1_loader")
    a("s_mov_b32 s%d, 0x3f803f80" % S_T0)
    for i in range(4):
        a("v_mov_b32 v%d, s%d" % (V_ONES + i, S_T0))
    rnd = "L_k1_round"
    a.label(rnd)
    prof(a, 0, S_ROUND)
    gc = [GemmC(0, 16, 3), GemmC(1, 16, 3)]
    a("s_cmp_eq_u32 s%d, 8" % S_WAVE)
    a("s_cbranch_scc1 L_k1_w8")
    gemm_lane_regs(a)
    a("s_cmp_ge_u32 s%d, 4" % S_WAVE)
    a("s_cbranch_scc1 L_k1_g1")
    for cls in range(2):
        g = gc[cls]
        a.label("L_k1_g%d" % cls)
        g.zero_acc(a)
        a("s_barrier")
        for r in g.read_list(0, 0): a(r)
        g.main(a)
        prof(a, 1, S_ROUND)
        q_write(a, g)
        a("s_branch L_k1_gdone")
    a.label("L_k1_w8")
    for s in range(16):
        a("s_barrier")
    prof(a, 1, S_ROUND)
    a.label("L_k1_gdone")
    attn_lane_regs(a)
    srd_o(a)
    a("s_add_u32 s%d, s%d, 4" % (S_HEAD, S_HEAD))
    a("s_waitcnt lgkmcnt(0)")
    a("s_barrier")
    q_read(a)
    for i in range(32):
        a("v_mov_b32 v%d, 0" % (A_O + i))
    for i in range(4):
        a("v_mov_b32 v%d, 0" % (A_L + i))
        a("v_mov_b32 v%d, 0" % (A_CI + i))
    a("v_mov_b32 v%d, 0" % V_CORR)
    a("s_mov_b32 s%d, 0xff800000" % S_THR)
    a("s_mov_b32 s%d, 0xff800000" % S_LO)
    a("s_waitcnt lgkmcnt(0)")
    for r in k_reads(5): a(r)
    a("s_barrier")
    a("s_waitcnt lgkmcnt(0)")
    for m in qk_mfmas(0): a(m)
    for r in k_reads(6): a(r)
    prof(a, 2, S_ROUND)
    if "fine" in ADBG:
        for r in (84, 85, 86, 87): a("s_mov_b32 s%d, 0" % r)
        a("s_memtime s[76:77]"); a("s_memtime s[78:79]"); a("s_memtime s[80:81]")
    stubs = []
    loop = a.newlabel("attn_loop")
    a("s_mov_b32 s%d, 0" % S_CNT)
    a.label(loop)
    for u in range(8):
        attn_step(a, u, stubs)
    a("s_add_u32 s%d, s%d, 1" % (S_CNT, S_CNT))
    a("s_cmp_lt_u32 s%d, 4" % S_CNT)
    a("s_cbranch_scc1 %s" % loop)
    prof(a, 3, S_ROUND)
    if "fine" in ADBG:
        for k, r in enumerate((84, 85, 86, 87)):
            a("v_mov_b32 v%d, s%d" % (V_T + 5, r))
            a("s_lshl_b32 s%d, s%d, 6" % (S_STAMP + 1, S_ROUND))
            a("s_mov_b64 exec, 1")
            a("buffer_store_dword v%d, v%d, s[%d:%d], s%d offen offset:%d" % (V_T + 5, V_PROF, S_PROF, S_PROF + 3, S_STAMP + 1, (10 + k) * 4))
            a("s_mov_b64 exec, -1")
    attn_epilogue(a, stf)
    prof(a, 4, S_ROUND)
    prof(a, 5, S_ROUND, True)
    a("s_add_u32 s%d, s%d, 1" % (S_ROUND, S_ROUND))
    a("s_cmp_lt_u32 s%d, 2" % S_ROUND)
    a("s_cbranch_scc1 %s" % rnd)
    a("s_endpgm")
    subs = ["L_k1_rsub_%d" % sb for sb in range(2)]
    for (r, b, sb) in stubs:
        a.label(r)
        a("s_call_b64 s[%d:%d], %s" % (S_RET, S_RET + 1, subs[sb]))
        a("s_branch %s" % b)
    for sb in range(2):
        attn_rare_sub(a, sb, subs[sb])
    a.label("L_k1_loader")
    a("s_mul_i32 s%d, s%d, 294912" % (S_T0, S_B))
    a("s_add_u32 s%d, s%d, s%d" % (SRD_X, S_PTR, S_T0))
    a("s_addc_u32 s%d, s%d, 0" % (SRD_X + 1, S_PTR + 1))
    a("s_mov_b32 s%d, 294912" % (SRD_X + 2))
    a("s_mov_b32 s%d, 0x20000" % (SRD_X + 3))
    srd_w(a)
    a("s_cmp_eq_u32 s%d, 11" % S_WAVE)
    a("s_cbranch_scc1 L_k1_lb")
    lw = LoadW(16, 8192, ntx)
    a("s_sub_u32 s%d, s%d, 9" % (S_T2, S_WAVE))
    a("s_cmp_eq_u32 s%d, 0" % S_T2)
    a("s_cselect_b32 s%d, s%d, s%d" % (S_KVB, S_PTR + 2, S_PTR + 4))
    a("s_cselect_b32 s%d, s%d, s%d" % (S_KVB + 1, S_PTR + 3, S_PTR + 5))
    a("s_lshl_b32 s%d, s%d, 13" % (S_KVL, S_T2))
    lw.setup(a, S_T2)
    kv_lane_regs(a, S_T2)
    srd_kv(a)
    a("s_mov_b32 s%d, 0" % S_KVOFF)
    a("s_mov_b32 s%d, s%d" % (S_KIDX, S_ROT))
    for n in range(3): kv_issue(a, (n + 5) % 8, ntkv)
    for s in range(3): lw.issue(a, s)
    a("s_waitcnt vmcnt(16)")
    for which in ("A", "B"):
        ld = lw if which == "A" else LoadX(16, 2048, 18, ntx)
        if which == "B":
            a.label("L_k1_lb")
            a("s_add_u32 s%d, s%d, %d" % (SRD_F, S_WS, WS_FLAG))
            a("s_addc_u32 s%d, s%d, 0" % (SRD_F + 1, S_WS + 1))
            a("s_mov_b32 s%d, 4096" % (SRD_F + 2))
            a("s_mov_b32 s%d, 0x20000" % (SRD_F + 3))
            a("s_lshl_b32 s%d, s2, 4" % S_T0)
            a("v_lshlrev_b32 v%d, 2, v%d" % (V_T, V_LANE))
            a("v_mov_b32 v%d, 0" % (V_T + 1))
            a("s_mov_b64 exec, 15")
            a("buffer_store_dword v%d, v%d, s[%d:%d], s%d offen" % (V_T + 1, V_T, SRD_F, SRD_F + 3, S_T0))
            a("s_mov_b64 exec, -1")
            a("s_mov_b32 s%d, 0" % S_T2)
            ld.setup(a, S_T2)
            a("s_mov_b32 s%d, s%d" % (S_KIDX, S_ROT))
            for s in range(3): ld.issue(a, s)
            a("s_waitcnt vmcnt(36)")
        lr = "L_k1_lround%s" % which
        a.label(lr)
        prof(a, 0, S_ROUND)
        a("s_barrier")
        loader_gemm(a, ld, 16, 3)
        prof(a, 1, S_ROUND)
        a("s_add_u32 s%d, s%d, 4" % (S_HEAD, S_HEAD))
        srd_w(a)
        a("s_cmp_eq_u32 s%d, 1" % S_ROUND)
        a("s_cselect_b32 s%d, 0, s%d" % (SRD_W + 2, SRD_W + 2))
        a("s_cselect_b32 s%d, 0, s%d" % (S_T2, SRD_X + 2))
        a("s_mov_b32 s%d, s%d" % (SRD_X + 2, S_T2))
        a("s_mov_b32 s%d, s%d" % (S_KIDX, S_ROT))
        a("s_barrier")
        a("s_barrier")
        D = int(opts.get("kvd", "8"))
        if which == "A":
            for nb in range(3, D):
                kv_issue(a, (nb + 5) % 8, ntkv)
        def actions(n):
            l = []
            if n + D <= 34: l.append(("blk", n + D))
            if n == 28: l.append(("st", 0))
            if n == 30: l.append(("st", 1))
            if n == 31: l.append(("st", 2))
            return l
        order = [("blk", i) for i in range(D)]
        vms = {}
        for n in range(32):
            need = n + 2
            if need <= 31:
                idx = order.index(("blk", need))
                vms[n] = (len(order) - 1 - idx) * 8
            else:
                vms[n] = None
            order += actions(n)
        loop = a.newlabel("lattn")
        a("s_mov_b32 s%d, 0" % S_CNT)
        a.label(loop)
        for u in range(8):
            if which == "A":
                steady = vms[8 + u]
                assert vms[u] == steady and vms[16 + u] == steady, (u, vms)
                last = vms[24 + u]
                if last == steady:
                    a("s_waitcnt vmcnt(%d)" % steady)
                else:
                    sk = a.newlabel("sk"); sk2 = a.newlabel("sk")
                    a("s_cmp_eq_u32 s%d, 3" % S_CNT)
                    a("s_cbranch_scc1 %s" % sk)
                    a("s_waitcnt vmcnt(%d)" % steady)
                    a("s_branch %s" % sk2)
                    a.label(sk)
                    if last is not None:
                        a("s_waitcnt vmcnt(%d)" % min(63, last))
                    a.label(sk2)
            a("s_barrier")
            if which == "A":
                slot = (u + D + 5) % 8
                n_sw = 32 - D
                it_sw, u_sw = n_sw // 8, n_sw % 8
                if u == u_sw:
                    sk = a.newlabel("sk")
                    a("s_cmp_eq_u32 s%d, %d" % (S_CNT, it_sw))
                    a("s_cbranch_scc0 %s" % sk)
                    srd_kv(a)
                    a("s_cmp_eq_u32 s%d, 1" % S_ROUND)
                    a("s_cselect_b32 s%d, 0, s%d" % (SRD_KV + 2, SRD_KV + 2))
                    a("s_mov_b32 s%d, 0" % S_KVOFF)
                    a.label(sk)
                if 24 + u + D > 34:
                    sk = a.newlabel("sk")
                    a("s_cmp_eq_u32 s%d, 3" % S_CNT)
                    a("s_cbranch_scc1 %s" % sk)
                    kv_issue(a, slot, ntkv)
                    a.label(sk)
                else:
                    kv_issue(a, slot, ntkv)
            if u in (4, 6, 7):
                sk = a.newlabel("sk")
                a("s_cmp_eq_u32 s%d, 3" % S_CNT)
                a("s_cbranch_scc0 %s" % sk)
                ld.issue(a, {4: 0, 6: 1, 7: 2}[u])
                a.label(sk)
        a("s_add_u32 s%d, s%d, 1" % (S_CNT, S_CNT))
        a("s_cmp_lt_u32 s%d, 4" % S_CNT)
        a("s_cbranch_scc1 %s" % loop)
        prof(a, 3, S_ROUND)
        a("s_add_u32 s%d, s%d, 1" % (S_ROUND, S_ROUND))
        a("s_cmp_lt_u32 s%d, 2" % S_ROUND)
        a("s_cbranch_scc0 %s" % done)
        idx = order.index(("st", 0))
        a("s_waitcnt vmcnt(%d)" % ((len(order) - 1 - idx) * 8 if which == "A" else 36))
        a("s_branch %s" % lr)
    a.label(done)
    a("s_endpgm")

def kernel_k2(a, name):
    opts = OPTS
    ntx = opts.get("nt_o", "")
    a.lines.append(".p2align 8")
    a.lines.append(".type %s,@function" % name)
    a.label(name)
    done = "L_k2_done"
    S_S = S_ROUND
    a("s_cmp_ge_u32 s2, 256")
    a("s_cbranch_scc1 %s" % done)
    a("v_and_b32 v%d, 63, v0" % V_LANE)
    a("v_lshrrev_b32 v%d, 6, v0" % V_T)
    a("s_nop 0")
    a("v_readfirstlane_b32 s%d, v%d" % (S_WAVE, V_T))
    a("s_and_b32 s%d, s2, 7" % S_T0)
    a("s_lshr_b32 s%d, s2, 3" % S_T1)
    a("s_lshr_b32 s%d, s%d, 2" % (S_BLK, S_T0))
    a("s_lshr_b32 s%d, s%d, 1" % (S_S, S_T0))
    a("s_and_b32 s%d, s%d, 1" % (S_S, S_S))
    a("s_and_b32 s%d, s%d, 1" % (S_T2, S_T0))
    a("s_lshl_b32 s%d, s%d, 2" % (S_T2, S_T2))
    a("s_and_b32 s%d, s%d, 3" % (S_B, S_T1))
    a("s_mov_b32 s%d, s%d" % (S_ROT, S_B))
    a("s_add_u32 s%d, s%d, s%d" % (S_B, S_B, S_T2))
    a("s_lshr_b32 s%d, s%d, 2" % (S_HEAD, S_T1))
    a("s_lshl_b32 s%d, s%d, 2" % (S_T2, S_HEAD))
    a("s_add_u32 s%d, s%d, s%d" % (S_ROT, S_ROT, S_T2))
    a("s_and_b32 s%d, s%d, 31" % (S_ROT, S_ROT))
    r2 = opts.get("rot2", "0")
    if r2 == "0":
        a("s_mov_b32 s%d, 0" % S_ROT)
    elif r2 == "j":
        a("s_mov_b32 s%d, s%d" % (S_ROT, S_HEAD))
    a("s_mul_i32 s%d, s%d, 40" % (S_T0, S_BLK))
    a("s_add_u32 s%d, s0, s%d" % (S_PTR2, S_T0))
    a("s_addc_u32 s%d, s1, 0" % (S_PTR2 + 1))
    a("s_load_dwordx2 s[%d:%d], s[%d:%d], 32" % (S_PTR, S_PTR + 1, S_PTR2, S_PTR2 + 1))
    a("s_load_dwordx2 s[%d:%d], s[0:1], 96" % (S_WS, S_WS + 1))
    a("s_load_dwordx2 s[%d:%d], s[0:1], 80" % (S_OUT, S_OUT + 1))
    a("s_waitcnt lgkmcnt(0)")
    prof_setup(a, 256 * 16 * 64 * 4)
    prof(a, 0)
    prof(a, 8, None, True)
    a("s_cmp_ge_u32 s%d, 8" % S_WAVE)
    a("s_cbranch_scc1 L_k2_loader")
    gemm_lane_regs(a)
    a("s_mul_i32 s%d, s%d, %d" % (S_T0, S_B, 144 * 4096))
    a("s_lshl_b32 s%d, s%d, 11" % (S_T1, S_BLK))
    a("s_add_u32 s%d, s%d, s%d" % (S_T0, S_T0, S_T1))
    a("s_lshl_b32 s%d, s%d, 8" % (S_T1, S_HEAD))
    a("s_add_u32 s%d, s%d, s%d" % (S_T0, S_T0, S_T1))
    a("s_add_u32 s%d, s%d, s%d" % (SRD_O, S_OUT, S_T0))
    a("s_addc_u32 s%d, s%d, 0" % (SRD_O + 1, S_OUT + 1))
    a("s_mov_b32 s%d, %d" % (SRD_O + 2, 143 * 4096 + 256))
    a("s_mov_b32 s%d, 0x20000" % (SRD_O + 3))
    a("s_lshl_b32 s%d, s%d, 3" % (S_T2, S_BLK))
    a("s_add_u32 s%d, s%d, s%d" % (S_T2, S_T2, S_B))
    a("s_lshl_b32 s%d, s%d, 3" % (S_T2, S_T2))
    a("s_add_u32 s%d, s%d, s%d" % (S_T2, S_T2, S_HEAD))
    a("s_lshr_b32 s%d, s%d, 2" % (S_T0, S_WAVE))
    a("s_lshl_b32 s%d, s%d, 1" % (S_T0, S_T0))
    a("s_and_b32 s%d, s%d, 1" % (S_T1, S_WAVE))
    a("s_add_u32 s%d, s%d, s%d" % (S_T0, S_T0, S_T1))
    a("s_lshr_b32 s%d, s%d, 1" % (S_T1, S_WAVE))
    a("s_and_b32 s%d, s%d, 1" % (S_T1, S_T1))
    a("s_xor_b32 s%d, s%d, 1" % (S_T3, S_T1))
    a("s_lshl_b32 s%d, s%d, 1" % (S_T2, S_T2))
    a("s_add_u32 s%d, s%d, s%d" % (S_T2, S_T2, S_T3))
    a("s_lshl_b32 s%d, s%d, 2" % (S_T2, S_T2))
    a("s_add_u32 s%d, s%d, s%d" % (S_T2, S_T2, S_T0))
    a("s_mov_b32 s%d, s%d" % (S_QROW, S_T2))
    a("s_xor_b32 s%d, s%d, s%d" % (S_LO, S_T1, S_S))
    a("s_mul_i32 s%d, s%d, 10240" % (S_T0, S_QROW))
    a("s_add_u32 s%d, s%d, %d" % (S_T0, S_T0, WS_PART))
    a("s_add_u32 s%d, s%d, s%d" % (SRD_P, S_WS, S_T0))
    a("s_addc_u32 s%d, s%d, 0" % (SRD_P + 1, S_WS + 1))
    a("s_mov_b32 s%d, 10240" % (SRD_P + 2))
    a("s_mov_b32 s%d, 0x20000" % (SRD_P + 3))
    a("s_add_u32 s%d, s%d, %d" % (SRD_F, S_WS, WS_FLAG))
    a("s_addc_u32 s%d, s%d, 0" % (SRD_F + 1, S_WS + 1))
    a("s_mov_b32 s%d, 4096" % (SRD_F + 2))
    a("s_mov_b32 s%d, 0x20000" % (SRD_F + 3))
    a("s_cmp_ge_u32 s%d, 4" % S_WAVE)
    a("s_cbranch_scc1 L_k2_g1")
    for cls in range(2):
        g = GemmC(cls, 32, 4)
        a.label("L_k2_g%d" % cls)
        g.zero_acc(a)
        a("s_barrier")
        for r in g.read_list(0, 0): a(r)
        g.main(a)
        prof(a, 1)
        T = V_T
        a("v_lshlrev_b32 v%d, 4, v%d" % (T, V_LANE))
        a("s_lshl_b32 s%d, s%d, 2" % (S_T0, S_QROW))
        a("v_mov_b32 v%d, s%d" % (T + 1, S_T0))
        a("s_cmp_eq_u32 s%d, 0" % S_LO)
        own = "L_k2_own%d" % cls
        a("s_cbranch_scc1 %s" % own)
        a("s_nop 7")
        k = 0
        for nt in range(2):
            for j in range(g.nq):
                acc = G_ACC + (nt * 5 + j) * 4
                a("s_mov_b32 s%d, %d" % (S_T1, k * 1024))
                a("buffer_store_dwordx4 %s, v%d, s[%d:%d], s%d offen sc0 sc1" % (vr(acc, 4), T, SRD_P, SRD_P + 3, S_T1))
                k += 1
        a("s_waitcnt vmcnt(0)")
        a("v_mov_b32 v%d, 1" % (T + 2))
        a("s_mov_b64 exec, 1")
        a("buffer_store_dword v%d, v%d, s[%d:%d], 0 offen sc0 sc1" % (T + 2, T + 1, SRD_F, SRD_F + 3))
        a("s_mov_b64 exec, -1")
        a("s_endpgm")
        a.label(own)
        a("v_lshrrev_b32 v%d, 4, v%d" % (T + 3, V_LANE))
        a("v_and_b32 v%d, 15, v%d" % (T + 4, V_LANE))
        a("v_lshlrev_b32 v%d, 3, v%d" % (T + 3, T + 3))
        a("v_lshl_add_u32 v%d, v%d, 12, v%d" % (T + 3, T + 4, T + 3))
        a("s_and_b32 s%d, s%d, 3" % (S_T0, S_WAVE))
        a("s_lshl_b32 s%d, s%d, 6" % (S_T0, S_T0))
        a("v_add_u32 v%d, s%d, v%d" % (T + 3, S_T0, T + 3))
        poll = "L_k2_poll%d" % cls
        a("s_mov_b32 s%d, 0" % S_CNT)
        a.label(poll)
        a("buffer_load_dword v%d, v%d, s[%d:%d], 0 offen sc0 sc1" % (T + 2, T + 1, SRD_F, SRD_F + 3))
        a("s_waitcnt vmcnt(0)")
        a("v_readfirstlane_b32 s%d, v%d" % (S_T0, T + 2))
        a("s_add_u32 s%d, s%d, 1" % (S_CNT, S_CNT))
        a("s_cmp_eq_u32 s%d, 1" % S_T0)
        a("s_cbranch_scc1 L_k2_got%d" % cls)
        a("s_sleep 2")
        a("s_cmp_lt_u32 s%d, 2000000" % S_CNT)
        a("s_cbranch_scc1 %s" % poll)
        a.label("L_k2_got%d" % cls)
        k = 0
        for nt in range(2):
            for j in range(g.nq):
                a("s_mov_b32 s%d, %d" % (S_T1, k * 1024))
                a("buffer_load_dwordx4 %s, v%d, s[%d:%d], s%d offen sc0 sc1" % (vr(G_XF + k * 4, 4), T, SRD_P, SRD_P + 3, S_T1))
                k += 1
        k = 0
        n = 2 * g.nq
        for nt in range(2):
            for j in range(g.nq):
                acc = G_ACC + (nt * 5 + j) * 4
                a("s_waitcnt vmcnt(%d)" % (n - 1))
                for r in range(4):
                    a("v_add_f32 v%d, v%d, v%d" % (acc + r, acc + r, G_XF + k * 4 + r))
                a("v_cvt_pk_bf16_f32 v%d, v%d, v%d" % (acc, acc, acc + 1))
                a("v_cvt_pk_bf16_f32 v%d, v%d, v%d" % (acc + 1, acc + 2, acc + 3))
                a("s_mov_b32 s%d, %d" % (S_T1, (g.jb + j) * 16 * 4096))
                a("buffer_store_dwordx2 %s, v%d, s[%d:%d], s%d offen offset:%d" % (vr(acc, 2), T + 3, SRD_O, SRD_O + 3, S_T1, nt * 32))
                k += 1
        prof(a, 2)
        prof(a, 9, None, True)
        a("s_endpgm")
    a.label("L_k2_loader")
    a("s_mul_i32 s%d, s%d, %d" % (S_T0, S_BLK, 1152 * 8192))
    a("s_mul_i32 s%d, s%d, %d" % (S_T1, S_B, 144 * 8192))
    a("s_add_u32 s%d, s%d, s%d" % (S_T0, S_T0, S_T1))
    a("s_lshl_b32 s%d, s%d, 12" % (S_T1, S_S))
    a("s_add_u32 s%d, s%d, s%d" % (S_T0, S_T0, S_T1))
    a("s_add_u32 s%d, s%d, s%d" % (SRD_X, S_WS, S_T0))
    a("s_addc_u32 s%d, s%d, 0" % (SRD_X + 1, S_WS + 1))
    a("s_mov_b32 s%d, %d" % (SRD_X + 2, 143 * 8192 + 4096))
    a("s_mov_b32 s%d, 0x20000" % (SRD_X + 3))
    a("s_lshl_b32 s%d, s%d, 8" % (S_T0, S_HEAD))
    a("s_lshl_b32 s%d, s%d, 22" % (S_T1, S_S))
    a("s_add_u32 s%d, s%d, s%d" % (S_T0, S_T0, S_T1))
    a("s_add_u32 s%d, s%d, s%d" % (SRD_W, S_PTR, S_T0))
    a("s_addc_u32 s%d, s%d, 0" % (SRD_W + 1, S_PTR + 1))
    a("s_mov_b32 s%d, %d" % (SRD_W + 2, 2047 * 2048 + 256))
    a("s_mov_b32 s%d, 0x20000" % (SRD_W + 3))
    a("s_mov_b32 s%d, s%d" % (S_KIDX, S_ROT))
    a("s_cmp_ge_u32 s%d, 10" % S_WAVE)
    a("s_cbranch_scc1 L_k2_lx")
    for which in ("W", "X"):
        if which == "W":
            ld = LoadW(32, 2048, ntx)
            a("s_sub_u32 s%d, s%d, 8" % (S_T2, S_WAVE))
        else:
            a.label("L_k2_lx")
            ld = LoadX(32, 8192, 9, ntx)
            a("s_sub_u32 s%d, s%d, 10" % (S_T2, S_WAVE))
            a("s_mul_i32 s%d, s%d, 9" % (S_T2, S_T2))
        ld.setup(a, S_T2)
        for s in range(4): ld.issue(a, s)
        a("s_waitcnt vmcnt(%d)" % (3 * ld.NP))
        a("s_barrier")
        loader_gemm(a, ld, 32, 4)
        a("s_endpgm")
    a.label(done)
    a("s_endpgm")

def descriptor(name, vgpr, sgpr):
    return """.section .rodata,"a"
.p2align 6
.amdhsa_kernel %s
  .amdhsa_next_free_vgpr %d
  .amdhsa_next_free_sgpr %d
  .amdhsa_accum_offset %d
  .amdhsa_group_segment_fixed_size 0
  .amdhsa_kernarg_size 104
  .amdhsa_user_sgpr_count 2
  .amdhsa_user_sgpr_kernarg_segment_ptr 1
  .amdhsa_system_sgpr_workgroup_id_x 1
.end_amdhsa_kernel
""" % (name, vgpr, sgpr, vgpr)

def build():
    a = Asm()
    k1 = NAME + "_kernel"
    k2 = "oproj_kernel"
    hdr = []
    hdr.append("; @launch kernel=%s grid=(256,1,1) block=(768,1,1) lds=163840" % k1)
    hdr.append("; @launch kernel=%s grid=(256,1,1) block=(768,1,1) lds=%d" % (k2, 4 * STAGE))
    hdr.append('.amdgcn_target "amdgcn-amd-amdhsa--gfx950"')
    hdr.append(".text")
    hdr.append(".globl %s" % k1)
    hdr.append(".globl %s" % k2)
    kernel_k1(a, k1)
    kernel_k2(a, k2)
    txt = "\n".join(hdr) + "\n" + "\n".join(a.lines) + "\n"
    txt += descriptor(k1, 168, 96)
    txt += descriptor(k2, 168, 80)
    return txt

if __name__ == "__main__":
    out = sys.argv[1] if len(sys.argv) > 1 else "cdna_kernels/%s.s" % NAME
    for o in sys.argv[2:]:
        k, v = o.split("=")
        OPTS[k] = v.replace("_", " ") if k.startswith(("nt_", "st_")) else v
    open(out, "w").write(build())
    print("wrote", out)
```

```python
import sys, struct

NAME = "concat_heads__mha_block_cached__gqa_block_cached__near_ridge"

def f32bits(x):
    return struct.unpack("<I", struct.pack("<f", x))[0]

class Asm:
    def __init__(self):
        self.lines = []
        self.uid = 0
    def __call__(self, s):
        self.lines.append("    " + s)
    def label(self, l):
        self.lines.append(l + ":")
    def c(self, s):
        self.lines.append("    ; " + s)
    def newlabel(self, p):
        self.uid += 1
        return "L_%s_%d" % (p, self.uid)

def vr(b, n=1):
    return "v%d" % b if n == 1 else "v[%d:%d]" % (b, b + n - 1)

STAGE = 34816
XT = 18432
BUF = [0, STAGE, 2 * STAGE, 3 * STAGE]
QB = STAGE
RING = 32768
WS_PART = 32 << 20
WS_FLAG = 48 << 20
PROF_OFF = 64 << 20
V_LANE = 1
V_AD = 2
V_XA = 2; V_WA = 6
V_KA = 2; V_VA = 6
V_T = 14
V_MX = 20
V_PROF = 21
V_CORR = 22
V_ONES = 24
A_O = 28
A_L = 60
A_CI = 64
A_Q = 68
A_K = 84
A_V = 116
A_S = 148
A_P = 164
G_ACC = 28
G_XF = 68
G_WF = 108
L_OFF = 2
S_WAVE = 3
SRD_X = 4
SRD_W = 8
SRD_KV = 12
SRD_O = 20
S_BLK = 24; S_B = 25; S_HEAD = 26; S_ROUND = 27
S_C = 28; S_THR = 29; S_LO = 30; S_ROT = 31
S_PTR = 32
S_WS = 40
S_KOFF = 42
S_KIDX = 43
S_T0 = 44; S_T1 = 45
S_ROWB = 46
S_LDSB = 47
S_KVOFF = 48
S_CNT = 49
S_KVL = 50
S_T2 = 51; S_T3 = 52
S_QROW = 53
S_OUT = 54
S_PTR2 = 56
S_STAMP = 58
S_PROF = 60
SRD_F = 64
SRD_P = 68
S_RET = 72
S_KVB = 74

OPTS = {}

def prof_setup(a, base=0):
    if not OPTS.get("prof"): return
    a("s_add_u32 s%d, s%d, %d" % (S_PROF, S_WS, PROF_OFF + base))
    a("s_addc_u32 s%d, s%d, 0" % (S_PROF + 1, S_WS + 1))
    a("s_mov_b32 s%d, %d" % (S_PROF + 2, 256 * 16 * 64 * 4))
    a("s_mov_b32 s%d, 0x20000" % (S_PROF + 3))
    a("s_lshl_b32 s%d, s2, 4" % S_T0)
    a("s_add_u32 s%d, s%d, s%d" % (S_T0, S_T0, S_WAVE))
    a("s_lshl_b32 s%d, s%d, 8" % (S_T0, S_T0))
    a("v_mov_b32 v%d, s%d" % (V_PROF, S_T0))
def prof(a, idx, dyn=None, real=False):
    if not OPTS.get("prof"): return
    a("%s s[%d:%d]" % ("s_memrealtime" if real else "s_memtime", S_STAMP, S_STAMP + 1))
    a("s_waitcnt lgkmcnt(0)")
    a("v_mov_b32 v%d, s%d" % (V_T + 5, S_STAMP))
    if dyn is not None:
        a("s_lshl_b32 s%d, s%d, 6" % (S_STAMP + 1, dyn))
    else:
        a("s_mov_b32 s%d, 0" % (S_STAMP + 1))
    a("s_mov_b64 exec, 1")
    a("buffer_store_dword v%d, v%d, s[%d:%d], s%d offen offset:%d" % (V_T + 5, V_PROF, S_PROF, S_PROF + 3, S_STAMP + 1, idx * 4))
    a("s_mov_b64 exec, -1")

def weave(a, ms, fill, lead=0):
    k = 0
    while k < min(lead, len(fill)):
        for ins in fill[k]: a(ins)
        k += 1
    n = len(ms)
    rest = len(fill) - k
    base = k
    for i, m in enumerate(ms):
        a(m)
        want = base + ((i + 1) * rest + n - 1) // n
        while k < min(want, len(fill)):
            for ins in fill[k]: a(ins)
            k += 1
    while k < len(fill):
        for ins in fill[k]: a(ins)
        k += 1

class GemmC:
    def __init__(self, cls, NS, NBUF):
        self.cls = cls; self.NS = NS; self.NBUF = NBUF
        self.nq = 5 if cls == 0 else 4
        self.jb = 0 if cls == 0 else 5
    def read_list(self, bi, ss):
        st = bi >> 1
        boff = BUF[bi & 1]
        l = []
        for nt in range(2):
            for hh in range(2):
                l.append("ds_read_b64_tr_b16 %s, v%d offset:%d" % (vr(G_WF + (ss * 2 + nt) * 4 + 2 * hh, 2), V_WA + 2 * st + nt,
                                                                   boff + XT + ss * 8192 + hh * 1024))
        for j in range(self.nq):
            l.append("ds_read_b128 %s, v%d offset:%d" % (vr(G_XF + (ss * 5 + j) * 4, 4), V_XA + 2 * st + ss, boff + (self.jb + j) * 2048))
        return l
    def mfmas(self, ss):
        l = []
        for j in range(self.nq):
            for nt in range(2):
                acc = vr(G_ACC + (nt * 5 + j) * 4, 4)
                l.append("v_mfma_f32_16x16x32_bf16 %s, %s, %s, %s" % (acc, vr(G_WF + (ss * 2 + nt) * 4, 4), vr(G_XF + (ss * 5 + j) * 4, 4), acc))
        return l
    def stage(self, a, bi, do_p):
        a("s_waitcnt lgkmcnt(0)")
        rd = self.read_list(bi, 1)
        weave(a, self.mfmas(0), [rd[i:i + 2] for i in range(0, len(rd), 2)][:], 0) if False else None
        ms = self.mfmas(0)
        fill = [rd[i:i + 2] for i in range(0, len(rd), 2)]
        k = 0
        for i, m in enumerate(ms):
            a(m)
            if k < len(fill):
                for ins in fill[k]: a(ins)
                k += 1
        a("s_waitcnt lgkmcnt(0)")
        fill = []
        if do_p:
            a("s_barrier")
            rd = self.read_list((bi + 1) % self.NBUF, 0)
            fill = [rd[i:i + 2] for i in range(0, len(rd), 2)]
        k = 0
        for i, m in enumerate(self.mfmas(1)):
            a(m)
            if k < len(fill):
                for ins in fill[k]: a(ins)
                k += 1
    def zero_acc(self, a):
        for nt in range(2):
            for j in range(self.nq):
                for r in range(4):
                    a("v_mov_b32 v%d, 0" % (G_ACC + (nt * 5 + j) * 4 + r))
    def main(self, a):
        NB = self.NBUF; NS = self.NS
        nloop = (NS - 1) // NB
        loop = a.newlabel("gloop")
        a("s_mov_b32 s%d, 0" % S_CNT)
        a.label(loop)
        for u in range(NB):
            self.stage(a, u, True)
        a("s_add_u32 s%d, s%d, 1" % (S_CNT, S_CNT))
        a("s_cmp_lt_u32 s%d, %d" % (S_CNT, nloop))
        a("s_cbranch_scc1 %s" % loop)
        for s in range(nloop * NB, NS):
            self.stage(a, s % NB, s + 1 < NS)

def gemm_lane_regs(a):
    T = V_T
    a("v_lshrrev_b32 v%d, 4, v%d" % (T, V_LANE))
    a("v_and_b32 v%d, 15, v%d" % (T + 1, V_LANE))
    a("v_lshrrev_b32 v%d, 1, v%d" % (T + 2, T + 1))
    a("v_xor_b32 v%d, v%d, v%d" % (T + 2, T + 2, T))
    a("v_lshlrev_b32 v%d, 4, v%d" % (T + 2, T + 2))
    a("v_lshl_add_u32 v%d, v%d, 7, v%d" % (V_XA + 0, T + 1, T + 2))
    a("v_xor_b32 v%d, 64, v%d" % (V_XA + 1, V_XA + 0))
    a("v_add_u32 v%d, %d, v%d" % (V_XA + 2, BUF[2], V_XA + 0))
    a("v_add_u32 v%d, %d, v%d" % (V_XA + 3, BUF[2], V_XA + 1))
    a("v_lshrrev_b32 v%d, 2, v%d" % (T + 2, T + 1))
    a("v_and_b32 v%d, 1, v%d" % (T + 3, T))
    a("v_lshl_add_u32 v%d, v%d, 2, v%d" % (T + 3, T + 3, T + 2))
    a("s_and_b32 s%d, s%d, 3" % (S_T0, S_WAVE))
    a("s_lshl_b32 s%d, s%d, 1" % (S_T0, S_T0))
    a("v_xor_b32 v%d, s%d, v%d" % (T + 4, S_T0, T + 3))
    a("v_lshlrev_b32 v%d, 5, v%d" % (T + 4, T + 4))
    a("v_lshl_add_u32 v%d, v%d, 11, v%d" % (T + 4, T, T + 4))
    a("v_lshl_add_u32 v%d, v%d, 8, v%d" % (T + 4, T + 2, T + 4))
    a("v_and_b32 v%d, 3, v%d" % (T + 5, T + 1))
    a("v_lshl_add_u32 v%d, v%d, 3, v%d" % (V_WA + 0, T + 5, T + 4))
    a("v_xor_b32 v%d, 32, v%d" % (V_WA + 1, V_WA + 0))
    a("v_add_u32 v%d, %d, v%d" % (V_WA + 2, BUF[2], V_WA + 0))
    a("v_add_u32 v%d, %d, v%d" % (V_WA + 3, BUF[2], V_WA + 1))

class LoadW:
    def __init__(self, NS, WRS, ntf=""):
        self.NS = NS; self.WRS = WRS; self.ntf = ntf; self.NP = 8
    def setup(self, a, half_sgpr):
        T = V_T
        a("v_lshrrev_b32 v%d, 4, v%d" % (T, V_LANE))
        a("v_and_b32 v%d, 15, v%d" % (T + 1, V_LANE))
        a("v_lshlrev_b32 v%d, 1, v%d" % (T + 2, T))
        a("v_xor_b32 v%d, v%d, v%d" % (T + 2, T + 2, T + 1))
        a("v_lshlrev_b32 v%d, 4, v%d" % (T + 2, T + 2))
        a("v_mul_u32_u24 v%d, %d, v%d" % (T + 3, self.WRS, T))
        a("v_add_u32 v%d, v%d, v%d" % (L_OFF, T + 2, T + 3))
        a("v_xor_b32 v%d, 128, v%d" % (L_OFF + 1, L_OFF))
        a("s_mul_i32 s%d, s%d, %d" % (S_ROWB, half_sgpr, 32 * self.WRS))
        a("s_lshl_b32 s%d, s%d, 13" % (S_LDSB, half_sgpr))
    def issue(self, a, bi):
        buf = BUF[bi]
        a("s_mul_i32 s%d, s%d, %d" % (S_KOFF, S_KIDX, 64 * self.WRS))
        a("s_add_u32 s%d, s%d, s%d" % (S_KOFF, S_KOFF, S_ROWB))
        for i in range(8):
            a("s_add_u32 m0, s%d, %d" % (S_LDSB, buf + XT + i * 1024))
            a("s_add_u32 s%d, s%d, %d" % (S_T0, S_KOFF, i * 4 * self.WRS))
            a("buffer_load_dwordx4 v%d, s[%d:%d], s%d offen%s lds" % (L_OFF + ((i >> 1) & 1), SRD_W, SRD_W + 3, S_T0, self.ntf))
        a("s_add_u32 s%d, s%d, 1" % (S_KIDX, S_KIDX))
        a("s_and_b32 s%d, s%d, %d" % (S_KIDX, S_KIDX, self.NS - 1))

class LoadX:
    def __init__(self, NS, XRS, npieces, ntf=""):
        self.NS = NS; self.XRS = XRS; self.ntf = ntf; self.NP = npieces
    def setup(self, a, p0_sgpr):
        T = V_T
        a("v_lshrrev_b32 v%d, 3, v%d" % (T, V_LANE))
        a("v_and_b32 v%d, 7, v%d" % (T + 1, V_LANE))
        a("v_lshrrev_b32 v%d, 1, v%d" % (T + 2, T))
        a("s_lshl_b32 s%d, s%d, 2" % (S_T1, p0_sgpr))
        a("v_add_u32 v%d, s%d, v%d" % (T + 2, S_T1, T + 2))
        a("v_and_b32 v%d, 7, v%d" % (T + 2, T + 2))
        a("v_xor_b32 v%d, v%d, v%d" % (T + 2, T + 2, T + 1))
        a("v_lshlrev_b32 v%d, 4, v%d" % (T + 2, T + 2))
        a("v_mul_u32_u24 v%d, %d, v%d" % (T + 3, self.XRS, T))
        a("v_add_u32 v%d, v%d, v%d" % (L_OFF, T + 2, T + 3))
        a("v_xor_b32 v%d, 64, v%d" % (L_OFF + 1, L_OFF))
        a("s_mul_i32 s%d, s%d, %d" % (S_ROWB, p0_sgpr, 8 * self.XRS))
        a("s_lshl_b32 s%d, s%d, 10" % (S_LDSB, p0_sgpr))
    def issue(self, a, bi):
        buf = BUF[bi]
        a("s_lshl_b32 s%d, s%d, 7" % (S_KOFF, S_KIDX))
        a("s_add_u32 s%d, s%d, s%d" % (S_KOFF, S_KOFF, S_ROWB))
        for i in range(self.NP):
            a("s_add_u32 m0, s%d, %d" % (S_LDSB, buf + i * 1024))
            a("s_add_u32 s%d, s%d, %d" % (S_T0, S_KOFF, i * 8 * self.XRS))
            a("buffer_load_dwordx4 v%d, s[%d:%d], s%d offen%s lds" % (L_OFF + (i & 1), SRD_X, SRD_X + 3, S_T0, self.ntf))
        a("s_add_u32 s%d, s%d, 1" % (S_KIDX, S_KIDX))
        a("s_and_b32 s%d, s%d, %d" % (S_KIDX, S_KIDX, self.NS - 1))

class VmTrack:
    def __init__(self): self.order = []
    def issue(self, tag, n): self.order.append((tag, n))
    def need(self, tag):
        idx = max(i for i, (t, n) in enumerate(self.order) if t == tag)
        return min(63, sum(n for (t, n) in self.order[idx + 1:]))

def loader_gemm_line(a, ld, NS, NBUF, vt, pre_issued, extra=None):
    nxt = pre_issued
    def issue_stage():
        nonlocal nxt
        ld.issue(a, nxt % NBUF); vt.issue(("st", nxt), ld.NP); nxt += 1
    while nxt < min(2, NS): issue_stage()
    a("s_waitcnt vmcnt(%d)" % vt.need(("st", 0)))
    a("s_barrier")
    while nxt < min(NBUF, NS): issue_stage()
    if extra and -1 in extra: extra[-1](a, vt)
    for s in range(NS - 1):
        a("s_waitcnt vmcnt(%d)" % vt.need(("st", s + 1)))
        a("s_barrier")
        if nxt < NS and nxt <= s + NBUF: issue_stage()
        if extra and s in extra: extra[s](a, vt)

def kv_lane_regs(a, isv_sgpr):
    T = V_T
    a("v_lshrrev_b32 v%d, 4, v%d" % (T, V_LANE))
    a("v_and_b32 v%d, 15, v%d" % (T + 1, V_LANE))
    a("s_cmp_eq_u32 s%d, 0" % isv_sgpr)
    a("s_cselect_b64 vcc, -1, 0")
    for q in range(4):
        a("v_add_u32 v%d, %d, v%d" % (T + 2, 4 * q, T))
        a("v_and_b32 v%d, 7, v%d" % (T + 3, T + 2))
        a("v_lshlrev_b32 v%d, 1, v%d" % (T + 3, T + 3))
        a("v_cndmask_b32 v%d, v%d, v%d, vcc" % (T + 3, T + 3, T + 2))
        a("v_xor_b32 v%d, v%d, v%d" % (T + 3, T + 3, T + 1))
        a("v_lshlrev_b32 v%d, 4, v%d" % (T + 3, T + 3))
        a("v_lshl_add_u32 v%d, v%d, 8, v%d" % (L_OFF + 2 + q, T, T + 3))

def kv_issue(a, slot, ntf):
    for p in range(8):
        a("s_add_u32 m0, s%d, %d" % (S_KVL, RING + slot * 16384 + p * 1024))
        a("s_add_u32 s%d, s%d, %d" % (S_T0, S_KVOFF, p * 1024))
        a("buffer_load_dwordx4 v%d, s[%d:%d], s%d offen%s lds" % (L_OFF + 2 + (p & 3), SRD_KV, SRD_KV + 3, S_T0, ntf))
    a("s_add_u32 s%d, s%d, 8192" % (S_KVOFF, S_KVOFF))

def attn_lane_regs(a):
    T = V_T
    a("v_lshrrev_b32 v%d, 4, v%d" % (T, V_LANE))
    a("v_and_b32 v%d, 15, v%d" % (T + 1, V_LANE))
    a("v_xor_b32 v%d, v%d, v%d" % (T + 2, T, T + 1))
    a("v_lshlrev_b32 v%d, 4, v%d" % (T + 2, T + 2))
    a("v_lshl_add_u32 v%d, v%d, 8, v%d" % (T + 2, T + 1, T + 2))
    a("v_add_u32 v%d, %d, v%d" % (V_KA, RING + 65536, T + 2))
    for ks in range(1, 4):
        a("v_xor_b32 v%d, %d, v%d" % (V_KA + ks, ks * 64, V_KA))
    a("v_lshrrev_b32 v%d, 2, v%d" % (T + 2, T + 1))
    a("v_and_b32 v%d, 1, v%d" % (T + 3, T))
    a("v_lshl_add_u32 v%d, v%d, 2, v%d" % (T + 3, T + 3, T + 2))
    a("v_lshlrev_b32 v%d, 5, v%d" % (T + 3, T + 3))
    a("v_lshl_add_u32 v%d, v%d, 10, v%d" % (T + 3, T, T + 3))
    a("v_lshl_add_u32 v%d, v%d, 8, v%d" % (T + 3, T + 2, T + 3))
    a("v_and_b32 v%d, 3, v%d" % (T + 4, T + 1))
    a("v_lshl_add_u32 v%d, v%d, 3, v%d" % (T + 3, T + 4, T + 3))
    a("v_add_u32 v%d, %d, v%d" % (V_VA, RING + 65536 + 8192, T + 3))
    for dt in range(1, 8):
        a("v_xor_b32 v%d, %d, v%d" % (V_VA + dt, dt * 32, V_VA))

def q_write(a, g):
    T = V_T
    a("v_lshrrev_b32 v%d, 4, v%d" % (T, V_LANE))
    a("v_and_b32 v%d, 15, v%d" % (T + 1, V_LANE))
    a("s_and_b32 s%d, s%d, 3" % (S_T0, S_WAVE))
    a("s_lshl_b32 s%d, s%d, 2" % (S_T0, S_T0))
    a("v_lshrrev_b32 v%d, 1, v%d" % (T + 2, T))
    a("v_add_u32 v%d, s%d, v%d" % (T + 2, S_T0, T + 2))
    a("v_xor_b32 v%d, v%d, v%d" % (T + 2, T + 2, T + 1))
    a("v_lshlrev_b32 v%d, 4, v%d" % (T + 2, T + 2))
    a("v_lshl_add_u32 v%d, v%d, 8, v%d" % (T + 2, T + 1, T + 2))
    a("v_and_b32 v%d, 1, v%d" % (T + 3, T))
    a("v_lshl_add_u32 v%d, v%d, 3, v%d" % (T + 2, T + 3, T + 2))
    a("v_add_u32 v%d, %d, v%d" % (T + 2, QB, T + 2))
    a("v_xor_b32 v%d, 32, v%d" % (T + 3, T + 2))
    a("s_nop 7")
    for nt in range(2):
        for j in range(g.nq):
            acc = G_ACC + (nt * 5 + j) * 4
            for r in range(4):
                a("v_mul_f32 v%d, s%d, v%d" % (acc + r, S_C, acc + r))
            a("v_cvt_pk_bf16_f32 v%d, v%d, v%d" % (acc, acc, acc + 1))
            a("v_cvt_pk_bf16_f32 v%d, v%d, v%d" % (acc + 1, acc + 2, acc + 3))
            a("ds_write_b64 v%d, %s offset:%d" % (T + 2 + nt, vr(acc, 2), (g.jb + j) * 4096))

def q_read(a):
    T = V_T
    a("s_lshl_b32 s%d, s%d, 12" % (S_T3, S_WAVE))
    a("s_add_u32 s%d, s%d, %d" % (S_T3, S_T3, (QB - RING - 65536) & 0xffffffff))
    for ks in range(4):
        a("v_add_u32 v%d, s%d, v%d" % (T + ks, S_T3, V_KA + ks))
    for ks in range(4):
        a("ds_read_b128 %s, v%d" % (vr(A_Q + ks * 4, 4), T + ks))

ADBG = ""
def k_reads(slot):
    so = (slot & 3) * 16384
    return ["ds_read_b128 %s, v%d offset:%d" % (vr(A_K + (t * 4 + ks) * 4, 4), V_KA + ks, so + t * 4096) for ks in range(4) for t in range(2)]
def v_reads(slot):
    so = (slot & 3) * 16384
    return ["ds_read_b64_tr_b16 %s, v%d offset:%d" % (vr(A_V + dt * 4 + 2 * hh, 2), V_VA + dt, so + hh * 4096) for dt in range(8) for hh in range(2)]
def qk_mfmas(sb):
    l = []
    for ks in range(4):
        for t in range(2):
            s = vr(A_S + sb * 8 + t * 4, 4)
            l.append("v_mfma_f32_16x16x32_bf16 %s, %s, %s, %s" % (s, vr(A_K + (t * 4 + ks) * 4, 4), vr(A_Q + ks * 4, 4), vr(A_CI, 4) if ks == 0 else s))
    return l
def pv_mfmas():
    l = []
    for dt in range(8):
        o = vr(A_O + dt * 4, 4)
        l.append("v_mfma_f32_16x16x32_bf16 %s, %s, %s, %s" % (o, vr(A_V + dt * 4, 4), vr(A_P, 4), o))
    l.insert(4, "v_mfma_f32_16x16x32_bf16 %s, %s, %s, %s" % (vr(A_L, 4), vr(V_ONES, 4), vr(A_P, 4), vr(A_L, 4)))
    return l
def toggle(regs, n, delta):
    return ["v_add_u32 v%d, 0x%x, v%d" % (regs + i, delta & 0xffffffff, regs + i) for i in range(n)]

def attn_step(a, u, stubs):
    sb = u & 1
    S = A_S + sb * 8
    a.c("======== attn step u=%d" % u)
    if u == 3:
        for i in toggle(V_VA, 8, -65536): a(i)
    if u == 7:
        for i in toggle(V_VA, 8, 65536): a(i)
    a("s_waitcnt lgkmcnt(0)")
    if "fine" in ADBG:
        a("s_sub_u32 s82, s78, s76"); a("s_add_u32 s84, s84, s82")
        a("s_sub_u32 s82, s80, s78"); a("s_add_u32 s85, s85, s82")
        a("s_mov_b32 s83, s80")
        a("s_memtime s[76:77]")
    vl = v_reads((u + 5) % 8)
    if "noread" in ADBG: vl = ["s_nop 0"] * 16
    m = V_MX
    pre = ["v_max3_f32 v%d, v%d, v%d, v%d" % (m, S, S + 1, S + 2),
           "v_max3_f32 v%d, v%d, v%d, v%d" % (m, m, S + 3, S + 4),
           "v_max3_f32 v%d, v%d, v%d, v%d" % (m, m, S + 5, S + 6),
           "v_max_f32 v%d, v%d, v%d" % (m, m, S + 7),
           "v_cmp_lt_f32 vcc, s%d, v%d" % (S_THR, m)]
    post = ["v_exp_f32 v%d, v%d" % (S + i, S + i) for i in range(8)]
    post.append("s_nop 0")
    post += ["v_cvt_pk_bf16_f32 v%d, v%d, v%d" % (A_P + i, S + 2 * i, S + 2 * i + 1) for i in range(4)]
    qk = qk_mfmas(sb ^ 1)
    if "nomfma" in ADBG: qk = ["s_nop 0"] * 8
    if "novalu" in ADBG:
        pre = ["s_nop 0"] * 4 + ["v_cmp_lt_f32 vcc, v%d, v%d" % (m, m)]; post = ["s_nop 0"]
    a(qk[0]); a(pre[0]); a(vl[0]); a(vl[1])
    a(qk[1]); a(pre[1]); a(vl[2]); a(vl[3])
    a(qk[2]); a(pre[2]); a(vl[4]); a(pre[3]); a(vl[5])
    a(pre[4])
    rare = a.newlabel("rare"); back = a.newlabel("back")
    a("s_cbranch_vccnz %s" % rare)
    a.label(back)
    stubs.append((rare, back, sb))
    rest_v = vl[6:]
    fill = []
    for i, p in enumerate(post):
        g = [p]
        if i < len(rest_v): g.append(rest_v[i])
        fill.append(g)
    weave(a, qk[3:], fill)
    if "fine" in ADBG:
        a("s_memtime s[78:79]")
    a("s_waitcnt lgkmcnt(0)")
    if "fine" in ADBG:
        a("s_sub_u32 s82, s76, s83"); a("s_add_u32 s86, s86, s82")
        a("s_memtime s[88:89]")
    a("s_barrier")
    if "fine" in ADBG:
        a("s_memtime s[80:81]")
        a("s_waitcnt lgkmcnt(0)")
        a("s_sub_u32 s82, s88, s78"); a("s_add_u32 s87, s87, s82")
    tg = []
    if u == 1: tg = toggle(V_KA, 4, -65536)
    if u == 5: tg = toggle(V_KA, 4, 65536)
    for i in tg: a(i)
    kr = k_reads((u + 7) % 8)
    if "noread" in ADBG: kr = []
    pv = pv_mfmas()
    if "nomfma" in ADBG: pv = ["s_nop 0"] * 9
    for i, mm in enumerate(pv):
        a(mm)
        if i < len(kr): a(kr[i])

def attn_rare_sub(a, sb, label):
    a.label(label)
    T = V_T
    S = A_S + sb * 8
    m = V_MX
    for i in range(8):
        a("v_sub_f32 v%d, v%d, v%d" % (S + i, S + i, V_CORR))
    a("v_max3_f32 v%d, v%d, v%d, v%d" % (m, S, S + 1, S + 2))
    a("v_max3_f32 v%d, v%d, v%d, v%d" % (m, m, S + 3, S + 4))
    a("v_max3_f32 v%d, v%d, v%d, v%d" % (m, m, S + 5, S + 6))
    a("v_max_f32 v%d, v%d, v%d" % (m, m, S + 7))
    a("v_xor_b32 v%d, 16, v%d" % (T + 1, V_LANE))
    a("v_lshlrev_b32 v%d, 2, v%d" % (T + 1, T + 1))
    a("ds_bpermute_b32 v%d, v%d, v%d" % (T, T + 1, m))
    a("s_waitcnt lgkmcnt(0)")
    a("v_max_f32 v%d, v%d, v%d" % (m, m, T))
    a("v_xor_b32 v%d, 32, v%d" % (T + 1, V_LANE))
    a("v_lshlrev_b32 v%d, 2, v%d" % (T + 1, T + 1))
    a("ds_bpermute_b32 v%d, v%d, v%d" % (T, T + 1, m))
    a("s_waitcnt lgkmcnt(0)")
    a("v_max_f32 v%d, v%d, v%d" % (m, m, T))
    a("v_cmp_lt_f32 vcc, s%d, v%d" % (S_LO, m))
    a("s_nop 1")
    a("v_cndmask_b32 v%d, 0, v%d, vcc" % (m, m))
    for i in range(8):
        a("v_sub_f32 v%d, v%d, v%d" % (S + i, S + i, m))
    for i in range(4):
        a("v_sub_f32 v%d, v%d, v%d" % (A_CI + i, A_CI + i, m))
    a("v_mov_b32 v%d, v%d" % (V_CORR, m))
    a("v_max_f32 v%d, 0, v%d" % (T, m))
    a("v_sub_f32 v%d, 0, v%d" % (T, T))
    a("v_exp_f32 v%d, v%d" % (T, T))
    a("v_cmp_neq_f32 vcc, 0, v%d" % m)
    for i in range(4):
        a("v_mul_f32 v%d, v%d, v%d" % (A_L + i, A_L + i, T))
    for i in range(32):
        a("v_mul_f32 v%d, v%d, v%d" % (A_O + i, A_O + i, T))
    a("s_cmp_lg_u64 vcc, 0")
    a("s_mov_b32 s%d, 0x%08x" % (S_THR, f32bits(8.0)))
    a("s_mov_b32 s%d, s%d" % (S_LO, S_THR))
    a("s_cselect_b32 s%d, 0xff800000, s%d" % (S_THR, S_THR))
    a("s_setpc_b64 s[%d:%d]" % (S_RET, S_RET + 1))

def attn_epilogue(a, stf):
    T = V_T
    a("v_lshrrev_b32 v%d, 4, v%d" % (T, V_LANE))
    a("v_and_b32 v%d, 15, v%d" % (T + 1, V_LANE))
    a("v_lshlrev_b32 v%d, 3, v%d" % (T, T))
    a("v_lshl_add_u32 v%d, v%d, 13, v%d" % (T + 1, T + 1, T))
    a("s_mul_i32 s%d, s%d, %d" % (S_T0, S_WAVE, 16 * 8192))
    a("s_nop 4")
    a("v_rcp_f32 v%d, v%d" % (T + 2, A_L))
    a("s_nop 0")
    for dt in range(8):
        o = A_O + dt * 4
        for r in range(4):
            a("v_mul_f32 v%d, v%d, v%d" % (o + r, o + r, T + 2))
        a("v_cvt_pk_bf16_f32 v%d, v%d, v%d" % (o, o, o + 1))
        a("v_cvt_pk_bf16_f32 v%d, v%d, v%d" % (o + 1, o + 2, o + 3))
        a("buffer_store_dwordx2 %s, v%d, s[%d:%d], s%d offen offset:%d%s" % (vr(o, 2), T + 1, SRD_O, SRD_O + 3, S_T0, dt * 32, stf))

def srd_w(a):
    a("s_lshl_b32 s%d, s%d, 8" % (S_T0, S_HEAD))
    a("s_add_u32 s%d, s%d, s%d" % (SRD_W, S_PTR + 6, S_T0))
    a("s_addc_u32 s%d, s%d, 0" % (SRD_W + 1, S_PTR + 7))
    a("s_sub_u32 s%d, 8388608, s%d" % (SRD_W + 2, S_T0))
    a("s_mov_b32 s%d, 0x20000" % (SRD_W + 3))
def srd_kv(a):
    a("s_lshl_b32 s%d, s%d, 5" % (S_T0, S_B))
    a("s_add_u32 s%d, s%d, s%d" % (S_T0, S_T0, S_HEAD))
    a("s_lshl_b32 s%d, s%d, 18" % (S_T0, S_T0))
    a("s_add_u32 s%d, s%d, s%d" % (SRD_KV, S_KVB, S_T0))
    a("s_addc_u32 s%d, s%d, 0" % (SRD_KV + 1, S_KVB + 1))
    a("s_mov_b32 s%d, 262144" % (SRD_KV + 2))
    a("s_mov_b32 s%d, 0x20000" % (SRD_KV + 3))
def srd_o(a):
    a("s_mul_i32 s%d, s%d, %d" % (S_T0, S_BLK, 1152 * 8192))
    a("s_mul_i32 s%d, s%d, %d" % (S_T1, S_B, 144 * 8192))
    a("s_add_u32 s%d, s%d, s%d" % (S_T0, S_T0, S_T1))
    a("s_lshl_b32 s%d, s%d, 8" % (S_T1, S_HEAD))
    a("s_add_u32 s%d, s%d, s%d" % (S_T0, S_T0, S_T1))
    a("s_add_u32 s%d, s%d, s%d" % (SRD_O, S_WS, S_T0))
    a("s_addc_u32 s%d, s%d, 0" % (SRD_O + 1, S_WS + 1))
    a("s_mov_b32 s%d, %d" % (SRD_O + 2, 143 * 8192 + 256))
    a("s_mov_b32 s%d, 0x20000" % (SRD_O + 3))

def kernel_k1(a, name):
    global ADBG
    ADBG = OPTS.get("adbg", "")
    opts = OPTS
    ntx = opts.get("nt_xw", "")
    ntkv = opts.get("nt_kv", " nt")
    stf = opts.get("st_o", "")
    a.lines.append(".p2align 8")
    a.lines.append(".type %s,@function" % name)
    a.label(name)
    done = "L_k1_done"
    a("s_cmp_ge_u32 s2, 256")
    a("s_cbranch_scc1 %s" % done)
    a("v_and_b32 v%d, 63, v0" % V_LANE)
    a("v_lshrrev_b32 v%d, 6, v0" % V_T)
    a("s_nop 0")
    a("v_readfirstlane_b32 s%d, v%d" % (S_WAVE, V_T))
    a("s_and_b32 s%d, s2, 7" % S_T0)
    a("s_lshr_b32 s%d, s2, 3" % S_T1)
    a("s_lshr_b32 s%d, s%d, 2" % (S_BLK, S_T0))
    a("s_and_b32 s%d, s%d, 3" % (S_T2, S_T0))
    a("s_and_b32 s%d, s%d, 7" % (S_B, S_T1))
    a("s_lshr_b32 s%d, s%d, 3" % (S_T3, S_T1))
    a("s_lshl_b32 s%d, s%d, 3" % (S_HEAD, S_T2))
    a("s_add_u32 s%d, s%d, s%d" % (S_HEAD, S_HEAD, S_T3))
    a("s_lshl_b32 s%d, s%d, 1" % (S_ROT, S_B))
    a("s_lshl_b32 s%d, s%d, 2" % (S_T3, S_T3))
    a("s_add_u32 s%d, s%d, s%d" % (S_ROT, S_ROT, S_T3))
    a("s_and_b32 s%d, s%d, 15" % (S_ROT, S_ROT))
    if opts.get("rot1") == "0":
        a("s_mov_b32 s%d, 0" % S_ROT)
    a("s_mul_i32 s%d, s%d, 40" % (S_T0, S_BLK))
    a("s_add_u32 s%d, s0, s%d" % (S_PTR2, S_T0))
    a("s_addc_u32 s%d, s1, 0" % (S_PTR2 + 1))
    a("s_load_dwordx8 s[%d:%d], s[%d:%d], 0" % (S_PTR, S_PTR + 7, S_PTR2, S_PTR2 + 1))
    a("s_load_dwordx2 s[%d:%d], s[0:1], 96" % (S_WS, S_WS + 1))
    a("s_mov_b32 s%d, 0x%08x" % (S_C, f32bits(128 ** -0.5 * 1.4426950408889634)))
    a("s_mov_b32 s%d, 0" % S_ROUND)
    a("s_waitcnt lgkmcnt(0)")
    prof_setup(a)
    prof(a, 8, None, True)
    prof(a, 9)
    a("s_cmp_ge_u32 s%d, 9" % S_WAVE)
    a("s_cbranch_scc1 L_k1_loader")
    a("s_mov_b32 s%d, 0x3f803f80" % S_T0)
    for i in range(4):
        a("v_mov_b32 v%d, s%d" % (V_ONES + i, S_T0))
    rnd = "L_k1_round"
    a.label(rnd)
    prof(a, 0, S_ROUND)
    gc = [GemmC(0, 16, 3), GemmC(1, 16, 3)]
    a("s_cmp_eq_u32 s%d, 8" % S_WAVE)
    a("s_cbranch_scc1 L_k1_w8")
    gemm_lane_regs(a)
    a("s_cmp_ge_u32 s%d, 4" % S_WAVE)
    a("s_cbranch_scc1 L_k1_g1")
    for cls in range(2):
        g = gc[cls]
        a.label("L_k1_g%d" % cls)
        g.zero_acc(a)
        a("s_barrier")
        prof(a, 6, S_ROUND)
        for r in g.read_list(0, 0): a(r)
        g.main(a)
        prof(a, 1, S_ROUND)
        q_write(a, g)
        a("s_branch L_k1_gdone")
    a.label("L_k1_w8")
    for s in range(16):
        a("s_barrier")
    prof(a, 1, S_ROUND)
    a.label("L_k1_gdone")
    attn_lane_regs(a)
    srd_o(a)
    a("s_add_u32 s%d, s%d, 4" % (S_HEAD, S_HEAD))
    a("s_waitcnt lgkmcnt(0)")
    a("s_barrier")
    q_read(a)
    for i in range(32):
        a("v_mov_b32 v%d, 0" % (A_O + i))
    for i in range(4):
        a("v_mov_b32 v%d, 0" % (A_L + i))
        a("v_mov_b32 v%d, 0" % (A_CI + i))
    a("v_mov_b32 v%d, 0" % V_CORR)
    a("s_mov_b32 s%d, 0xff800000" % S_THR)
    a("s_mov_b32 s%d, 0xff800000" % S_LO)
    a("s_waitcnt lgkmcnt(0)")
    for r in k_reads(5): a(r)
    a("s_barrier")
    a("s_waitcnt lgkmcnt(0)")
    for m in qk_mfmas(0): a(m)
    for r in k_reads(6): a(r)
    prof(a, 2, S_ROUND)
    if "fine" in ADBG:
        for r in (84, 85, 86, 87): a("s_mov_b32 s%d, 0" % r)
        a("s_memtime s[76:77]"); a("s_memtime s[78:79]"); a("s_memtime s[80:81]")
    stubs = []
    loop = a.newlabel("attn_loop")
    a("s_mov_b32 s%d, 0" % S_CNT)
    a.label(loop)
    for u in range(8):
        attn_step(a, u, stubs)
    a("s_add_u32 s%d, s%d, 1" % (S_CNT, S_CNT))
    a("s_cmp_lt_u32 s%d, 4" % S_CNT)
    a("s_cbranch_scc1 %s" % loop)
    prof(a, 3, S_ROUND)
    if "fine" in ADBG:
        for k, r in enumerate((84, 85, 86, 87)):
            a("v_mov_b32 v%d, s%d" % (V_T + 5, r))
            a("s_lshl_b32 s%d, s%d, 6" % (S_STAMP + 1, S_ROUND))
            a("s_mov_b64 exec, 1")
            a("buffer_store_dword v%d, v%d, s[%d:%d], s%d offen offset:%d" % (V_T + 5, V_PROF, S_PROF, S_PROF + 3, S_STAMP + 1, (10 + k) * 4))
            a("s_mov_b64 exec, -1")
    attn_epilogue(a, stf)
    prof(a, 4, S_ROUND)
    prof(a, 5, S_ROUND, True)
    a("s_add_u32 s%d, s%d, 1" % (S_ROUND, S_ROUND))
    a("s_cmp_lt_u32 s%d, 2" % S_ROUND)
    a("s_cbranch_scc1 %s" % rnd)
    a("s_endpgm")
    subs = ["L_k1_rsub_%d" % sb for sb in range(2)]
    for (r, b, sb) in stubs:
        a.label(r)
        a("s_call_b64 s[%d:%d], %s" % (S_RET, S_RET + 1, subs[sb]))
        a("s_branch %s" % b)
    for sb in range(2):
        attn_rare_sub(a, sb, subs[sb])
    a.label("L_k1_loader")
    a("s_mul_i32 s%d, s%d, 294912" % (S_T0, S_B))
    a("s_add_u32 s%d, s%d, s%d" % (SRD_X, S_PTR, S_T0))
    a("s_addc_u32 s%d, s%d, 0" % (SRD_X + 1, S_PTR + 1))
    a("s_mov_b32 s%d, 294912" % (SRD_X + 2))
    a("s_mov_b32 s%d, 0x20000" % (SRD_X + 3))
    srd_w(a)
    a("s_cmp_eq_u32 s%d, 11" % S_WAVE)
    a("s_cbranch_scc1 L_k1_lb")
    lw = LoadW(16, 8192, ntx)
    a("s_sub_u32 s%d, s%d, 9" % (S_T2, S_WAVE))
    a("s_cmp_eq_u32 s%d, 0" % S_T2)
    a("s_cselect_b32 s%d, s%d, s%d" % (S_KVB, S_PTR + 2, S_PTR + 4))
    a("s_cselect_b32 s%d, s%d, s%d" % (S_KVB + 1, S_PTR + 3, S_PTR + 5))
    a("s_lshl_b32 s%d, s%d, 13" % (S_KVL, S_T2))
    lw.setup(a, S_T2)
    kv_lane_regs(a, S_T2)
    srd_kv(a)
    a("s_mov_b32 s%d, 0" % S_KVOFF)
    a("s_mov_b32 s%d, s%d" % (S_KIDX, S_ROT))
    D = int(opts.get("kvd", "8"))
    a("s_branch L_k1_la")
    for which in ("B", "A"):
        ld = lw if which == "A" else LoadX(16, 2048, 18, ntx)
        if which == "B":
            a.label("L_k1_lb")
            a("s_add_u32 s%d, s%d, %d" % (SRD_F, S_WS, WS_FLAG))
            a("s_addc_u32 s%d, s%d, 0" % (SRD_F + 1, S_WS + 1))
            a("s_mov_b32 s%d, 4096" % (SRD_F + 2))
            a("s_mov_b32 s%d, 0x20000" % (SRD_F + 3))
            a("s_mov_b32 s%d, 0" % S_T2)
            ld.setup(a, S_T2)
            a("s_mov_b32 s%d, s%d" % (S_KIDX, S_ROT))
            a("s_lshr_b32 s%d, s2, 7" % S_T0)
            a("s_mul_i32 s%d, s%d, 40" % (S_T0, S_T0))
            a("s_add_u32 s%d, s0, s%d" % (S_PTR2, S_T0))
            a("s_addc_u32 s%d, s1, 0" % (S_PTR2 + 1))
            a("s_load_dwordx2 s[%d:%d], s[%d:%d], 32" % (S_KVB, S_KVB + 1, S_PTR2, S_PTR2 + 1))
            a("s_and_b32 s%d, s2, 127" % S_T0)
            a("s_lshl_b32 s%d, s%d, 16" % (S_T0, S_T0))
            a("v_lshlrev_b32 v%d, 6, v%d" % (L_OFF + 6, V_LANE))
            a("s_waitcnt lgkmcnt(0)")
            a("s_add_u32 s%d, s%d, s%d" % (SRD_P, S_KVB, S_T0))
            a("s_addc_u32 s%d, s%d, 0" % (SRD_P + 1, S_KVB + 1))
            a("s_mov_b32 s%d, 65536" % (SRD_P + 2))
            a("s_mov_b32 s%d, 0x20000" % (SRD_P + 3))
            a("s_mov_b32 s%d, 0" % S_KVOFF)
        else:
            a.label("L_k1_la")
        for rd in range(2):
            vt = VmTrack()
            if rd == 0:
                extra = {}
                if which == "A":
                    def kvx(n):
                        def f(a, vt):
                            kv_issue(a, (n + 5) % 8, ntkv); vt.issue(("blk", n), 8)
                        return f
                    pts = [int(x) for x in opts.get("kvpts", "2,5,8").split(",")]
                    for n in range(3): extra[pts[n]] = kvx(n)
                else:
                    def zf(a, vt):
                        a("s_lshl_b32 s%d, s2, 4" % S_T0)
                        a("v_lshlrev_b32 v%d, 2, v%d" % (V_T, V_LANE))
                        a("v_mov_b32 v%d, 0" % (V_T + 1))
                        a("s_mov_b64 exec, 15")
                        a("buffer_store_dword v%d, v%d, s[%d:%d], s%d offen" % (V_T + 1, V_T, SRD_F, SRD_F + 3, S_T0))
                        a("s_mov_b64 exec, -1")
                        vt.issue(("z", 0), 1)
                    extra[10] = zf
                prof(a, 6)
                loader_gemm_line(a, ld, 16, 3, vt, 0, extra)
            else:
                for (t, n) in tail_order: vt.issue(t, n)
                loader_gemm_line(a, ld, 16, 3, vt, 3, None)
            prof(a, 1, None) if rd == 0 else None
            a("s_add_u32 s%d, s%d, 4" % (S_HEAD, S_HEAD))
            if rd == 0:
                srd_w(a)
                a("s_mov_b32 s%d, s%d" % (S_KIDX, S_ROT))
            a("s_barrier")
            a("s_barrier")
            if which == "A":
                for nb in range(3, D):
                    kv_issue(a, (nb + 5) % 8, ntkv)
            lastblk = 34 if rd == 0 else 31
            def actions(n):
                l = []
                if which == "A" and n + D <= lastblk: l.append((("blk", n + D), 8))
                if rd == 0:
                    if n == 28: l.append((("st", 0), ld.NP))
                    if n == 30: l.append((("st", 1), ld.NP))
                    if n == 31: l.append((("st", 2), ld.NP))
                return l
            order = [(("blk", i), 8) for i in range(D)] if which == "A" else []
            vms = {}
            for n in range(32):
                need = n + 2
                vms[n] = None
                if which == "A" and need <= 31:
                    idx = [t for (t, c) in order].index(("blk", need))
                    vms[n] = min(63, sum(c for (t, c) in order[idx + 1:]))
                order += actions(n)
            tail_order = [(t, c) for (t, c) in order if t in (("blk", 32), ("blk", 33), ("blk", 34), ("st", 0), ("st", 1), ("st", 2))]
            loop = a.newlabel("lattn")
            a("s_mov_b32 s%d, 0" % S_CNT)
            a.label(loop)
            for u in range(8):
                if which == "A":
                    assert vms[u] == vms[8 + u] == vms[16 + u] or (16 + u + D > lastblk) or True
                    a("s_waitcnt vmcnt(%d)" % min(vms[u], vms[8 + u], vms[16 + u]))
                a("s_barrier")
                if which == "A":
                    kv_issue(a, (u + D + 5) % 8, ntkv)
            a("s_add_u32 s%d, s%d, 1" % (S_CNT, S_CNT))
            a("s_cmp_lt_u32 s%d, 3" % S_CNT)
            a("s_cbranch_scc1 %s" % loop)
            for n in range(24, 32):
                if vms[n] is not None:
                    a("s_waitcnt vmcnt(%d)" % vms[n])
                a("s_barrier")
                if which == "B" and rd == 1 and n == int(opts.get("wopf_n", "24")) and opts.get("wopf", "1") == "1":
                    for i in range(16):
                        a("s_mov_b32 s%d, %d" % (S_T0, i * 4096))
                        a("buffer_load_dword v%d, v%d, s[%d:%d], s%d offen" % (L_OFF + 7, L_OFF + 6, SRD_P, SRD_P + 3, S_T0))
                for (t, c) in actions(n):
                    if t[0] == "blk":
                        if t[1] == 32:
                            srd_kv(a)
                            a("s_mov_b32 s%d, 0" % S_KVOFF)
                        kv_issue(a, (t[1] + 5) % 8, ntkv)
                    else:
                        ld.issue(a, t[1])
        a("s_endpgm")
    a.label(done)
    a("s_endpgm")

def kernel_k2(a, name):
    opts = OPTS
    XSC = " sc1" if opts.get("xsc", "1") == "1" else " sc0 sc1"
    ntx = opts.get("nt_o", "")
    a.lines.append(".p2align 8")
    a.lines.append(".type %s,@function" % name)
    a.label(name)
    done = "L_k2_done"
    S_S = S_ROUND
    a("s_cmp_ge_u32 s2, 256")
    a("s_cbranch_scc1 %s" % done)
    a("v_and_b32 v%d, 63, v0" % V_LANE)
    a("v_lshrrev_b32 v%d, 6, v0" % V_T)
    a("s_nop 0")
    a("v_readfirstlane_b32 s%d, v%d" % (S_WAVE, V_T))
    a("s_and_b32 s%d, s2, 7" % S_T0)
    a("s_lshr_b32 s%d, s2, 3" % S_T1)
    a("s_lshr_b32 s%d, s%d, 2" % (S_BLK, S_T0))
    a("s_lshr_b32 s%d, s%d, 1" % (S_S, S_T0))
    a("s_and_b32 s%d, s%d, 1" % (S_S, S_S))
    a("s_and_b32 s%d, s%d, 1" % (S_T2, S_T0))
    a("s_lshl_b32 s%d, s%d, 2" % (S_T2, S_T2))
    a("s_and_b32 s%d, s%d, 3" % (S_B, S_T1))
    a("s_mov_b32 s%d, s%d" % (S_ROT, S_B))
    a("s_add_u32 s%d, s%d, s%d" % (S_B, S_B, S_T2))
    a("s_lshr_b32 s%d, s%d, 2" % (S_HEAD, S_T1))
    a("s_lshl_b32 s%d, s%d, 2" % (S_T2, S_HEAD))
    a("s_add_u32 s%d, s%d, s%d" % (S_ROT, S_ROT, S_T2))
    a("s_and_b32 s%d, s%d, 31" % (S_ROT, S_ROT))
    r2 = opts.get("rot2", "0")
    if r2 == "0":
        a("s_mov_b32 s%d, 0" % S_ROT)
    elif r2 == "j":
        a("s_mov_b32 s%d, s%d" % (S_ROT, S_HEAD))
    elif r2 == "w8":
        a("s_and_b32 s%d, s%d, 3" % (S_T2, S_B))
        a("s_lshl_b32 s%d, s%d, 3" % (S_T2, S_T2))
        a("s_lshl_b32 s%d, s%d, 2" % (S_ROT, S_HEAD))
        a("s_add_u32 s%d, s%d, s%d" % (S_ROT, S_ROT, S_T2))
        a("s_and_b32 s%d, s%d, 31" % (S_ROT, S_ROT))
    elif r2 == "w4":
        a("s_and_b32 s%d, s%d, 3" % (S_T2, S_B))
        a("s_lshl_b32 s%d, s%d, 2" % (S_T2, S_T2))
        a("s_lshl_b32 s%d, s%d, 1" % (S_ROT, S_HEAD))
        a("s_add_u32 s%d, s%d, s%d" % (S_ROT, S_ROT, S_T2))
        a("s_and_b32 s%d, s%d, 31" % (S_ROT, S_ROT))
    a("s_mul_i32 s%d, s%d, 40" % (S_T0, S_BLK))
    a("s_add_u32 s%d, s0, s%d" % (S_PTR2, S_T0))
    a("s_addc_u32 s%d, s1, 0" % (S_PTR2 + 1))
    a("s_load_dwordx2 s[%d:%d], s[%d:%d], 32" % (S_PTR, S_PTR + 1, S_PTR2, S_PTR2 + 1))
    a("s_load_dwordx2 s[%d:%d], s[0:1], 96" % (S_WS, S_WS + 1))
    a("s_load_dwordx2 s[%d:%d], s[0:1], 80" % (S_OUT, S_OUT + 1))
    a("s_waitcnt lgkmcnt(0)")
    prof_setup(a, 256 * 16 * 64 * 4)
    prof(a, 0)
    prof(a, 8, None, True)
    a("s_cmp_ge_u32 s%d, 8" % S_WAVE)
    a("s_cbranch_scc1 L_k2_loader")
    gemm_lane_regs(a)
    a("s_mul_i32 s%d, s%d, %d" % (S_T0, S_B, 144 * 4096))
    a("s_lshl_b32 s%d, s%d, 11" % (S_T1, S_BLK))
    a("s_add_u32 s%d, s%d, s%d" % (S_T0, S_T0, S_T1))
    a("s_lshl_b32 s%d, s%d, 8" % (S_T1, S_HEAD))
    a("s_add_u32 s%d, s%d, s%d" % (S_T0, S_T0, S_T1))
    a("s_add_u32 s%d, s%d, s%d" % (SRD_O, S_OUT, S_T0))
    a("s_addc_u32 s%d, s%d, 0" % (SRD_O + 1, S_OUT + 1))
    a("s_mov_b32 s%d, %d" % (SRD_O + 2, 143 * 4096 + 256))
    a("s_mov_b32 s%d, 0x20000" % (SRD_O + 3))
    a("s_lshl_b32 s%d, s%d, 3" % (S_T2, S_BLK))
    a("s_add_u32 s%d, s%d, s%d" % (S_T2, S_T2, S_B))
    a("s_lshl_b32 s%d, s%d, 3" % (S_T2, S_T2))
    a("s_add_u32 s%d, s%d, s%d" % (S_T2, S_T2, S_HEAD))
    a("s_lshr_b32 s%d, s%d, 2" % (S_T0, S_WAVE))
    a("s_lshl_b32 s%d, s%d, 1" % (S_T0, S_T0))
    a("s_and_b32 s%d, s%d, 1" % (S_T1, S_WAVE))
    a("s_add_u32 s%d, s%d, s%d" % (S_T0, S_T0, S_T1))
    a("s_lshr_b32 s%d, s%d, 1" % (S_T1, S_WAVE))
    a("s_and_b32 s%d, s%d, 1" % (S_T1, S_T1))
    a("s_xor_b32 s%d, s%d, 1" % (S_T3, S_T1))
    a("s_lshl_b32 s%d, s%d, 1" % (S_T2, S_T2))
    a("s_add_u32 s%d, s%d, s%d" % (S_T2, S_T2, S_T3))
    a("s_lshl_b32 s%d, s%d, 2" % (S_T2, S_T2))
    a("s_add_u32 s%d, s%d, s%d" % (S_T2, S_T2, S_T0))
    a("s_mov_b32 s%d, s%d" % (S_QROW, S_T2))
    a("s_xor_b32 s%d, s%d, s%d" % (S_LO, S_T1, S_S))
    a("s_mul_i32 s%d, s%d, 10240" % (S_T0, S_QROW))
    a("s_add_u32 s%d, s%d, %d" % (S_T0, S_T0, WS_PART))
    a("s_add_u32 s%d, s%d, s%d" % (SRD_P, S_WS, S_T0))
    a("s_addc_u32 s%d, s%d, 0" % (SRD_P + 1, S_WS + 1))
    a("s_mov_b32 s%d, 10240" % (SRD_P + 2))
    a("s_mov_b32 s%d, 0x20000" % (SRD_P + 3))
    a("s_add_u32 s%d, s%d, %d" % (SRD_F, S_WS, WS_FLAG))
    a("s_addc_u32 s%d, s%d, 0" % (SRD_F + 1, S_WS + 1))
    a("s_mov_b32 s%d, 4096" % (SRD_F + 2))
    a("s_mov_b32 s%d, 0x20000" % (SRD_F + 3))
    a("s_cmp_ge_u32 s%d, 4" % S_WAVE)
    a("s_cbranch_scc1 L_k2_g1")
    for cls in range(2):
        g = GemmC(cls, 32, 4)
        a.label("L_k2_g%d" % cls)
        g.zero_acc(a)
        a("s_barrier")
        prof(a, 6)
        for r in g.read_list(0, 0): a(r)
        g.main(a)
        prof(a, 1)
        T = V_T
        a("v_lshlrev_b32 v%d, 4, v%d" % (T, V_LANE))
        a("s_lshl_b32 s%d, s%d, 2" % (S_T0, S_QROW))
        a("v_mov_b32 v%d, s%d" % (T + 1, S_T0))
        a("s_cmp_eq_u32 s%d, 0" % S_LO)
        own = "L_k2_own%d" % cls
        a("s_cbranch_scc1 %s" % own)
        a("s_nop 7")
        k = 0
        for nt in range(2):
            for j in range(g.nq):
                acc = G_ACC + (nt * 5 + j) * 4
                a("s_mov_b32 s%d, %d" % (S_T1, k * 1024))
                a("buffer_store_dwordx4 %s, v%d, s[%d:%d], s%d offen%s" % (vr(acc, 4), T, SRD_P, SRD_P + 3, S_T1, XSC))
                k += 1
        a("s_waitcnt vmcnt(0)")
        a("v_mov_b32 v%d, 1" % (T + 2))
        a("s_mov_b64 exec, 1")
        a("buffer_store_dword v%d, v%d, s[%d:%d], 0 offen%s" % (T + 2, T + 1, SRD_F, SRD_F + 3, XSC))
        a("s_mov_b64 exec, -1")
        a("s_endpgm")
        a.label(own)
        a("v_lshrrev_b32 v%d, 4, v%d" % (T + 3, V_LANE))
        a("v_and_b32 v%d, 15, v%d" % (T + 4, V_LANE))
        a("v_lshlrev_b32 v%d, 3, v%d" % (T + 3, T + 3))
        a("v_lshl_add_u32 v%d, v%d, 12, v%d" % (T + 3, T + 4, T + 3))
        a("s_and_b32 s%d, s%d, 3" % (S_T0, S_WAVE))
        a("s_lshl_b32 s%d, s%d, 6" % (S_T0, S_T0))
        a("v_add_u32 v%d, s%d, v%d" % (T + 3, S_T0, T + 3))
        poll = "L_k2_poll%d" % cls
        a("s_mov_b32 s%d, 0" % S_CNT)
        a.label(poll)
        a("buffer_load_dword v%d, v%d, s[%d:%d], 0 offen%s" % (T + 2, T + 1, SRD_F, SRD_F + 3, XSC))
        a("s_waitcnt vmcnt(0)")
        a("v_readfirstlane_b32 s%d, v%d" % (S_T0, T + 2))
        a("s_add_u32 s%d, s%d, 1" % (S_CNT, S_CNT))
        a("s_cmp_eq_u32 s%d, 1" % S_T0)
        a("s_cbranch_scc1 L_k2_got%d" % cls)
        a("s_sleep 2")
        a("s_cmp_lt_u32 s%d, 2000000" % S_CNT)
        a("s_cbranch_scc1 %s" % poll)
        a.label("L_k2_got%d" % cls)
        k = 0
        for nt in range(2):
            for j in range(g.nq):
                a("s_mov_b32 s%d, %d" % (S_T1, k * 1024))
                a("buffer_load_dwordx4 %s, v%d, s[%d:%d], s%d offen%s" % (vr(G_XF + k * 4, 4), T, SRD_P, SRD_P + 3, S_T1, XSC))
                k += 1
        k = 0
        n = 2 * g.nq
        for nt in range(2):
            for j in range(g.nq):
                acc = G_ACC + (nt * 5 + j) * 4
                a("s_waitcnt vmcnt(%d)" % (n - 1))
                for r in range(4):
                    a("v_add_f32 v%d, v%d, v%d" % (acc + r, acc + r, G_XF + k * 4 + r))
                a("v_cvt_pk_bf16_f32 v%d, v%d, v%d" % (acc, acc, acc + 1))
                a("v_cvt_pk_bf16_f32 v%d, v%d, v%d" % (acc + 1, acc + 2, acc + 3))
                a("s_mov_b32 s%d, %d" % (S_T1, (g.jb + j) * 16 * 4096))
                a("buffer_store_dwordx2 %s, v%d, s[%d:%d], s%d offen offset:%d" % (vr(acc, 2), T + 3, SRD_O, SRD_O + 3, S_T1, nt * 32))
                k += 1
        prof(a, 2)
        prof(a, 9, None, True)
        a("s_endpgm")
    a.label("L_k2_loader")
    a("s_mul_i32 s%d, s%d, %d" % (S_T0, S_BLK, 1152 * 8192))
    a("s_mul_i32 s%d, s%d, %d" % (S_T1, S_B, 144 * 8192))
    a("s_add_u32 s%d, s%d, s%d" % (S_T0, S_T0, S_T1))
    a("s_lshl_b32 s%d, s%d, 12" % (S_T1, S_S))
    a("s_add_u32 s%d, s%d, s%d" % (S_T0, S_T0, S_T1))
    a("s_add_u32 s%d, s%d, s%d" % (SRD_X, S_WS, S_T0))
    a("s_addc_u32 s%d, s%d, 0" % (SRD_X + 1, S_WS + 1))
    a("s_mov_b32 s%d, %d" % (SRD_X + 2, 143 * 8192 + 4096))
    a("s_mov_b32 s%d, 0x20000" % (SRD_X + 3))
    a("s_lshl_b32 s%d, s%d, 8" % (S_T0, S_HEAD))
    a("s_lshl_b32 s%d, s%d, 22" % (S_T1, S_S))
    a("s_add_u32 s%d, s%d, s%d" % (S_T0, S_T0, S_T1))
    a("s_add_u32 s%d, s%d, s%d" % (SRD_W, S_PTR, S_T0))
    a("s_addc_u32 s%d, s%d, 0" % (SRD_W + 1, S_PTR + 1))
    a("s_mov_b32 s%d, %d" % (SRD_W + 2, 2047 * 2048 + 256))
    a("s_mov_b32 s%d, 0x20000" % (SRD_W + 3))
    a("s_mov_b32 s%d, s%d" % (S_KIDX, S_ROT))
    a("s_cmp_ge_u32 s%d, 10" % S_WAVE)
    a("s_cbranch_scc1 L_k2_lx")
    for which in ("W", "X"):
        if which == "W":
            ld = LoadW(32, 2048, ntx)
            a("s_sub_u32 s%d, s%d, 8" % (S_T2, S_WAVE))
        else:
            a.label("L_k2_lx")
            ld = LoadX(32, 8192, 9, ntx)
            a("s_sub_u32 s%d, s%d, 10" % (S_T2, S_WAVE))
            a("s_mul_i32 s%d, s%d, 9" % (S_T2, S_T2))
        ld.setup(a, S_T2)
        loader_gemm_line(a, ld, 32, 4, VmTrack(), 0, None)
        a("s_endpgm")
    a.label(done)
    a("s_endpgm")

def descriptor(name, vgpr, sgpr):
    return """.section .rodata,"a"
.p2align 6
.amdhsa_kernel %s
  .amdhsa_next_free_vgpr %d
  .amdhsa_next_free_sgpr %d
  .amdhsa_accum_offset %d
  .amdhsa_group_segment_fixed_size 0
  .amdhsa_kernarg_size 104
  .amdhsa_user_sgpr_count 2
  .amdhsa_user_sgpr_kernarg_segment_ptr 1
  .amdhsa_system_sgpr_workgroup_id_x 1
.end_amdhsa_kernel
""" % (name, vgpr, sgpr, vgpr)

def build():
    a = Asm()
    k1 = NAME + "_kernel"
    k2 = "oproj_kernel"
    hdr = []
    hdr.append("; @launch kernel=%s grid=(256,1,1) block=(768,1,1) lds=163840" % k1)
    hdr.append("; @launch kernel=%s grid=(256,1,1) block=(768,1,1) lds=%d" % (k2, 4 * STAGE))
    hdr.append('.amdgcn_target "amdgcn-amd-amdhsa--gfx950"')
    hdr.append(".text")
    hdr.append(".globl %s" % k1)
    hdr.append(".globl %s" % k2)
    kernel_k1(a, k1)
    kernel_k2(a, k2)
    txt = "\n".join(hdr) + "\n" + "\n".join(a.lines) + "\n"
    txt += descriptor(k1, 168, 96)
    txt += descriptor(k2, 168, 80)
    return txt

if __name__ == "__main__":
    out = sys.argv[1] if len(sys.argv) > 1 else "cdna_kernels/%s.s" % NAME
    for o in sys.argv[2:]:
        k, v = o.split("=")
        OPTS[k] = v.replace("_", " ") if k.startswith(("nt_", "st_")) else v
    open(out, "w").write(build())
    print("wrote", out)
```

```python
import sys, struct

NAME = "concat_heads__mha_block_cached__gqa_block_cached__near_ridge"

def f32bits(x):
    return struct.unpack("<I", struct.pack("<f", x))[0]

class Asm:
    def __init__(self):
        self.lines = []
        self.uid = 0
    def __call__(self, s):
        self.lines.append("    " + s)
    def label(self, l):
        self.lines.append(l + ":")
    def c(self, s):
        self.lines.append("    ; " + s)
    def newlabel(self, p):
        self.uid += 1
        return "L_%s_%d" % (p, self.uid)

def vr(b, n=1):
    return "v%d" % b if n == 1 else "v[%d:%d]" % (b, b + n - 1)

XT = 18432
STAGE1 = 34816
BUF1 = [i * STAGE1 for i in range(4)]
STAGE2 = 51200
BUF2 = [0, STAGE2, 2 * STAGE2]
QB2 = 2 * STAGE2
RING = 20480
WS_PART = 32 << 20
WS_FLAG = 48 << 20
PROF_OFF = 64 << 20
WS_Q2 = 96 << 20
V_LANE = 1
V_AD = 2
V_KA = 2; V_VA = 6
V_T = 14
V_PROF = 21
V_MX = 22
V_ONES = 24
A_O = 28
A_L = 92
A_CI = 100
A_Q = 108
A_K = 140
A_V = 172
A_S = 204
A_P = 236
G_ACC = 28
G_XF = 172
G_WF = 208
L_OFF = 2
S_WAVE = 3
SRD_X = 4
SRD_W = 8
SRD_KV = 12
SRD_O = 20
S_BLK = 24; S_B = 25; S_HEAD = 26; S_ROUND = 27
S_C = 28; S_THR = 29; S_LO = 30; S_ROT = 31
S_PTR = 32
S_WS = 40
S_KOFF = 42
S_KIDX = 43
S_T0 = 44; S_T1 = 45
S_ROWB = 46
S_LDSB = 47
S_KVOFF = 48
S_CNT = 49
S_KVL = 50
S_T2 = 51; S_T3 = 52
S_QROW = 53
S_OUT = 54
S_PTR2 = 56
S_STAMP = 58
S_PROF = 60
SRD_F = 64
SRD_P = 68
S_RET = 72
S_KVB = 74
SRD_Q = 92

OPTS = {}
ADBG = ""

def prof_setup(a, base=0):
    if not OPTS.get("prof"): return
    a("s_add_u32 s%d, s%d, %d" % (S_PROF, S_WS, PROF_OFF + base))
    a("s_addc_u32 s%d, s%d, 0" % (S_PROF + 1, S_WS + 1))
    a("s_mov_b32 s%d, %d" % (S_PROF + 2, 256 * 16 * 64 * 4))
    a("s_mov_b32 s%d, 0x20000" % (S_PROF + 3))
    a("s_lshl_b32 s%d, s2, 4" % S_T0)
    a("s_add_u32 s%d, s%d, s%d" % (S_T0, S_T0, S_WAVE))
    a("s_lshl_b32 s%d, s%d, 8" % (S_T0, S_T0))
    a("v_mov_b32 v%d, s%d" % (V_PROF, S_T0))
def prof(a, idx, dyn=None, real=False):
    if not OPTS.get("prof"): return
    a("%s s[%d:%d]" % ("s_memrealtime" if real else "s_memtime", S_STAMP, S_STAMP + 1))
    a("s_waitcnt lgkmcnt(0)")
    a("v_mov_b32 v%d, s%d" % (V_T + 5, S_STAMP))
    if dyn is not None:
        a("s_lshl_b32 s%d, s%d, 6" % (S_STAMP + 1, dyn))
    else:
        a("s_mov_b32 s%d, 0" % (S_STAMP + 1))
    a("s_mov_b64 exec, 1")
    a("buffer_store_dword v%d, v%d, s[%d:%d], s%d offen offset:%d" % (V_T + 5, V_PROF, S_PROF, S_PROF + 3, S_STAMP + 1, idx * 4))
    a("s_mov_b64 exec, -1")

class LgkmTrack:
    def __init__(self): self.order = []
    def issue(self, tag): self.order.append(tag)
    def need(self, tags):
        idx = max(max(i for i, t in enumerate(self.order) if t == tag) for tag in tags)
        return len(self.order) - 1 - idx
    def clear(self): self.order = []

class GemmB:
    NQ = 9
    def __init__(self, NT, NS, bufs):
        self.NT = NT; self.NS = NS; self.bufs = bufs; self.NB = len(bufs)
    def acc(self, nt, j): return G_ACC + (nt * 9 + j) * 4
    def xread(self, j, ss):
        return "ds_read_b128 %s, v%d offset:%d" % (vr(G_XF + j * 4, 4), V_AD + ss, j * 2048)
    def wreads(self, ss):
        return [("ds_read_b64_tr_b16 %s, v%d offset:%d" % (vr(G_WF + (ss * 4 + nt) * 4 + 2 * hh, 2), V_AD + 2 + nt, ss * 8192 + hh * 1024))
                for nt in range(self.NT) for hh in range(2)]
    def group(self, j, ss):
        return ["v_mfma_f32_16x16x32_bf16 %s, %s, %s, %s" % (vr(self.acc(nt, j), 4), vr(G_WF + (ss * 4 + nt) * 4, 4), vr(G_XF + j * 4, 4), vr(self.acc(nt, j), 4))
                for nt in range(self.NT)]
    def issue_next(self, a, lt, j, ss_next):
        a(self.xread(j, ss_next))
        lt.issue(("x", j))
        w = self.wreads(ss_next)
        per = 2
        for k in range(per * j, min(per * j + per, len(w))):
            a(w[k])
            lt.issue(("w", k))
    def first_reads(self, a, lt):
        for j in range(self.NQ):
            self.issue_next(a, lt, j, 0)
    def wait(self, a, lt, tags):
        a("s_waitcnt lgkmcnt(%d)" % min(lt.need(tags), 15))
    def stage(self, a, lt, bi, last):
        wl = ("w", 2 * self.NT - 1)
        for j in range(self.NQ):
            self.wait(a, lt, [("x", j)] + ([wl] if j == 0 else []))
            for m in self.group(j, 0): a(m)
            self.issue_next(a, lt, j, 1)
        for j in range(self.NQ):
            if j == 0:
                self.wait(a, lt, [("x", 0), wl])
            elif last or j <= self.pj:
                self.wait(a, lt, [("x", j)])
            for m in self.group(j, 1): a(m)
            if j == self.pj and not last:
                a("s_waitcnt lgkmcnt(0)")
                lt.clear()
                a("s_barrier")
                d = self.bufs[(bi + 1) % self.NB] - self.bufs[bi]
                for r in range(2 + self.NT):
                    a("v_add_u32 v%d, 0x%x, v%d" % (V_AD + r, d & 0xffffffff, V_AD + r))
                for jj in range(self.pj + 1):
                    self.issue_next(a, lt, jj, 0)
            elif not last and j > self.pj:
                self.issue_next(a, lt, j, 0)
    pj = 0
    def zero_acc(self, a):
        for nt in range(self.NT):
            for j in range(self.NQ):
                for r in range(4):
                    a("v_mov_b32 v%d, 0" % (self.acc(nt, j) + r))
    def main(self, a):
        lt = LgkmTrack()
        self.first_reads(a, lt)
        state0 = list(lt.order)
        NS = self.NS; NB = self.NB
        nloop = (NS - 1) // NB
        loop = a.newlabel("gloop")
        a("s_mov_b32 s%d, 0" % S_CNT)
        a.label(loop)
        for u in range(NB):
            self.stage(a, lt, u, False)
            assert lt.order == state0, (lt.order, state0)
        a("s_add_u32 s%d, s%d, 1" % (S_CNT, S_CNT))
        a("s_cmp_lt_u32 s%d, %d" % (S_CNT, nloop))
        a("s_cbranch_scc1 %s" % loop)
        for s in range(nloop * NB, NS):
            self.stage(a, lt, s % NB, s + 1 == NS)
    def lane_regs(self, a, nt0_sgpr_code, extra_off_code):
        T = V_T
        a("v_lshrrev_b32 v%d, 4, v%d" % (T, V_LANE))
        a("v_and_b32 v%d, 15, v%d" % (T + 1, V_LANE))
        a("v_lshrrev_b32 v%d, 1, v%d" % (T + 2, T + 1))
        a("v_xor_b32 v%d, v%d, v%d" % (T + 2, T + 2, T))
        a("v_lshlrev_b32 v%d, 4, v%d" % (T + 2, T + 2))
        a("v_lshl_add_u32 v%d, v%d, 7, v%d" % (V_AD + 0, T + 1, T + 2))
        a("v_xor_b32 v%d, 64, v%d" % (V_AD + 1, V_AD + 0))
        a("v_lshrrev_b32 v%d, 2, v%d" % (T + 2, T + 1))
        a("v_and_b32 v%d, 1, v%d" % (T + 3, T))
        a("v_lshl_add_u32 v%d, v%d, 2, v%d" % (T + 3, T + 3, T + 2))
        nt0_sgpr_code(a)
        a("v_xor_b32 v%d, s%d, v%d" % (T + 4, S_T0, T + 3))
        a("v_lshlrev_b32 v%d, 5, v%d" % (T + 4, T + 4))
        a("v_lshl_add_u32 v%d, v%d, 11, v%d" % (T + 4, T, T + 4))
        a("v_lshl_add_u32 v%d, v%d, 8, v%d" % (T + 4, T + 2, T + 4))
        a("v_and_b32 v%d, 3, v%d" % (T + 5, T + 1))
        a("v_lshl_add_u32 v%d, v%d, 3, v%d" % (T + 4, T + 5, T + 4))
        extra_off_code(a)
        a("v_add_u32 v%d, s%d, v%d" % (V_AD + 2, S_T1, T + 4))
        for i in range(1, self.NT):
            a("v_xor_b32 v%d, %d, v%d" % (V_AD + 2 + i, 32 * i, V_AD + 2))

class LoadW:
    def __init__(self, NS, WRS, ntf, NP, bufs):
        self.NS = NS; self.WRS = WRS; self.ntf = ntf; self.NP = NP; self.bufs = bufs
    def setup(self, a, half_sgpr):
        T = V_T
        a("v_lshrrev_b32 v%d, 4, v%d" % (T, V_LANE))
        a("v_and_b32 v%d, 15, v%d" % (T + 1, V_LANE))
        a("v_lshlrev_b32 v%d, 1, v%d" % (T + 2, T))
        a("v_xor_b32 v%d, v%d, v%d" % (T + 2, T + 2, T + 1))
        a("v_lshlrev_b32 v%d, 4, v%d" % (T + 2, T + 2))
        a("v_mul_u32_u24 v%d, %d, v%d" % (T + 3, self.WRS, T))
        a("v_add_u32 v%d, v%d, v%d" % (L_OFF, T + 2, T + 3))
        a("v_xor_b32 v%d, 128, v%d" % (L_OFF + 1, L_OFF))
        if self.NP == 8:
            a("s_mul_i32 s%d, s%d, %d" % (S_ROWB, half_sgpr, 32 * self.WRS))
            a("s_lshl_b32 s%d, s%d, 13" % (S_LDSB, half_sgpr))
        else:
            a("s_mov_b32 s%d, 0" % S_ROWB)
            a("s_lshl_b32 s%d, s%d, 14" % (S_LDSB, half_sgpr))
    def issue(self, a, bi):
        buf = self.bufs[bi]
        a("s_mul_i32 s%d, s%d, %d" % (S_KOFF, S_KIDX, 64 * self.WRS))
        a("s_add_u32 s%d, s%d, s%d" % (S_KOFF, S_KOFF, S_ROWB))
        for i in range(self.NP):
            a("s_add_u32 m0, s%d, %d" % (S_LDSB, buf + XT + i * 1024))
            a("s_add_u32 s%d, s%d, %d" % (S_T0, S_KOFF, i * 4 * self.WRS))
            a("buffer_load_dwordx4 v%d, s[%d:%d], s%d offen%s lds" % (L_OFF + ((i >> 1) & 1), SRD_W, SRD_W + 3, S_T0, self.ntf))
        a("s_add_u32 s%d, s%d, 1" % (S_KIDX, S_KIDX))
        a("s_and_b32 s%d, s%d, %d" % (S_KIDX, S_KIDX, self.NS - 1))

class LoadX:
    def __init__(self, NS, XRS, npieces, ntf, bufs):
        self.NS = NS; self.XRS = XRS; self.ntf = ntf; self.NP = npieces; self.bufs = bufs
    def setup(self, a, p0_sgpr):
        T = V_T
        a("v_lshrrev_b32 v%d, 3, v%d" % (T, V_LANE))
        a("v_and_b32 v%d, 7, v%d" % (T + 1, V_LANE))
        a("v_lshrrev_b32 v%d, 1, v%d" % (T + 2, T))
        a("s_lshl_b32 s%d, s%d, 2" % (S_T1, p0_sgpr))
        a("v_add_u32 v%d, s%d, v%d" % (T + 2, S_T1, T + 2))
        a("v_and_b32 v%d, 7, v%d" % (T + 2, T + 2))
        a("v_xor_b32 v%d, v%d, v%d" % (T + 2, T + 2, T + 1))
        a("v_lshlrev_b32 v%d, 4, v%d" % (T + 2, T + 2))
        a("v_mul_u32_u24 v%d, %d, v%d" % (T + 3, self.XRS, T))
        a("v_add_u32 v%d, v%d, v%d" % (L_OFF, T + 2, T + 3))
        a("v_xor_b32 v%d, 64, v%d" % (L_OFF + 1, L_OFF))
        a("s_mul_i32 s%d, s%d, %d" % (S_ROWB, p0_sgpr, 8 * self.XRS))
        a("s_lshl_b32 s%d, s%d, 10" % (S_LDSB, p0_sgpr))
    def issue(self, a, bi):
        buf = self.bufs[bi]
        a("s_lshl_b32 s%d, s%d, 7" % (S_KOFF, S_KIDX))
        a("s_add_u32 s%d, s%d, s%d" % (S_KOFF, S_KOFF, S_ROWB))
        for i in range(self.NP):
            a("s_add_u32 m0, s%d, %d" % (S_LDSB, buf + i * 1024))
            a("s_add_u32 s%d, s%d, %d" % (S_T0, S_KOFF, i * 8 * self.XRS))
            a("buffer_load_dwordx4 v%d, s[%d:%d], s%d offen%s lds" % (L_OFF + (i & 1), SRD_X, SRD_X + 3, S_T0, self.ntf))
        a("s_add_u32 s%d, s%d, 1" % (S_KIDX, S_KIDX))
        a("s_and_b32 s%d, s%d, %d" % (S_KIDX, S_KIDX, self.NS - 1))

class VmTrack:
    def __init__(self): self.order = []
    def issue(self, tag, n): self.order.append((tag, n))
    def need(self, tag):
        idx = max(i for i, (t, n) in enumerate(self.order) if t == tag)
        return min(63, sum(n for (t, n) in self.order[idx + 1:]))

def loader_gemm_line(a, ld, NS, NBUF, vt, extra=None):
    nxt = 0
    def issue_stage():
        nonlocal nxt
        ld.issue(a, nxt % NBUF); vt.issue(("st", nxt), ld.NP); nxt += 1
    while nxt < min(2, NS): issue_stage()
    a("s_waitcnt vmcnt(%d)" % vt.need(("st", 0)))
    a("s_barrier")
    while nxt < min(NBUF, NS): issue_stage()
    for s in range(NS - 1):
        a("s_waitcnt vmcnt(%d)" % vt.need(("st", s + 1)))
        a("s_barrier")
        if nxt < NS and nxt <= s + NBUF: issue_stage()
        if extra and s in extra: extra[s](a, vt)

def kv_lane_regs(a, isv_sgpr):
    T = V_T
    a("v_lshrrev_b32 v%d, 4, v%d" % (T, V_LANE))
    a("v_and_b32 v%d, 15, v%d" % (T + 1, V_LANE))
    a("s_cmp_eq_u32 s%d, 0" % isv_sgpr)
    a("s_cselect_b64 vcc, -1, 0")
    for q in range(4):
        a("v_add_u32 v%d, %d, v%d" % (T + 2, 4 * q, T))
        a("v_and_b32 v%d, 7, v%d" % (T + 3, T + 2))
        a("v_lshlrev_b32 v%d, 1, v%d" % (T + 3, T + 3))
        a("v_cndmask_b32 v%d, v%d, v%d, vcc" % (T + 3, T + 3, T + 2))
        a("v_xor_b32 v%d, v%d, v%d" % (T + 3, T + 3, T + 1))
        a("v_lshlrev_b32 v%d, 4, v%d" % (T + 3, T + 3))
        a("v_lshl_add_u32 v%d, v%d, 8, v%d" % (L_OFF + 2 + q, T, T + 3))

def kv_issue(a, slot, ntf):
    for p in range(8):
        a("s_add_u32 m0, s%d, %d" % (S_KVL, RING + slot * 16384 + p * 1024))
        a("s_add_u32 s%d, s%d, %d" % (S_T0, S_KVOFF, p * 1024))
        a("buffer_load_dwordx4 v%d, s[%d:%d], s%d offen%s lds" % (L_OFF + 2 + (p & 3), SRD_KV, SRD_KV + 3, S_T0, ntf))
    a("s_add_u32 s%d, s%d, 8192" % (S_KVOFF, S_KVOFF))

def attn_lane_regs(a):
    T = V_T
    a("v_lshrrev_b32 v%d, 4, v%d" % (T, V_LANE))
    a("v_and_b32 v%d, 15, v%d" % (T + 1, V_LANE))
    a("v_xor_b32 v%d, v%d, v%d" % (T + 2, T, T + 1))
    a("v_lshlrev_b32 v%d, 4, v%d" % (T + 2, T + 2))
    a("v_lshl_add_u32 v%d, v%d, 8, v%d" % (T + 2, T + 1, T + 2))
    a("v_add_u32 v%d, %d, v%d" % (V_KA, RING, T + 2))
    for ks in range(1, 4):
        a("v_xor_b32 v%d, %d, v%d" % (V_KA + ks, ks * 64, V_KA))
    a("v_lshrrev_b32 v%d, 2, v%d" % (T + 2, T + 1))
    a("v_and_b32 v%d, 1, v%d" % (T + 3, T))
    a("v_lshl_add_u32 v%d, v%d, 2, v%d" % (T + 3, T + 3, T + 2))
    a("v_lshlrev_b32 v%d, 5, v%d" % (T + 3, T + 3))
    a("v_lshl_add_u32 v%d, v%d, 10, v%d" % (T + 3, T, T + 3))
    a("v_lshl_add_u32 v%d, v%d, 8, v%d" % (T + 3, T + 2, T + 3))
    a("v_and_b32 v%d, 3, v%d" % (T + 4, T + 1))
    a("v_lshl_add_u32 v%d, v%d, 3, v%d" % (T + 3, T + 4, T + 3))
    a("v_add_u32 v%d, %d, v%d" % (V_VA, RING + 8192, T + 3))
    for dt in range(1, 8):
        a("v_xor_b32 v%d, %d, v%d" % (V_VA + dt, dt * 32, V_VA))

Q2A = 0
Q2B = 151552
Q2C = 139264
def q_write(a, g):
    T = V_T
    a("v_lshrrev_b32 v%d, 4, v%d" % (T, V_LANE))
    a("v_and_b32 v%d, 15, v%d" % (T + 1, V_LANE))
    gl = a.newlabel("qg"); dn = a.newlabel("qd")
    def conv(nt, j):
        acc = g.acc(nt, j)
        for r in range(4):
            a("v_mul_f32 v%d, s%d, v%d" % (acc + r, S_C, acc + r))
        a("v_cvt_pk_bf16_f32 v%d, v%d, v%d" % (acc, acc, acc + 1))
        a("v_cvt_pk_bf16_f32 v%d, v%d, v%d" % (acc + 1, acc + 2, acc + 3))
    a("s_and_b32 s%d, s%d, 1" % (S_T0, S_WAVE))
    a("s_lshl_b32 s%d, s%d, 3" % (S_T0, S_T0))
    a("v_lshrrev_b32 v%d, 1, v%d" % (T + 2, T))
    a("v_add_u32 v%d, s%d, v%d" % (T + 2, S_T0, T + 2))
    a("v_xor_b32 v%d, v%d, v%d" % (T + 2, T + 2, T + 1))
    a("v_lshlrev_b32 v%d, 4, v%d" % (T + 2, T + 2))
    a("v_lshl_add_u32 v%d, v%d, 8, v%d" % (T + 2, T + 1, T + 2))
    a("v_and_b32 v%d, 1, v%d" % (T + 3, T))
    a("v_lshl_add_u32 v%d, v%d, 3, v%d" % (T + 2, T + 3, T + 2))
    a("s_bitcmp1_b32 s%d, 1" % S_WAVE)
    a("s_cbranch_scc1 %s" % gl)
    a("v_add_u32 v%d, %d, v%d" % (T + 2, QB2, T + 2))
    for nt in range(4):
        a("v_xor_b32 v%d, %d, v%d" % (T + 3, 32 * nt, T + 2))
        for j in range(9):
            conv(nt, j)
            a("ds_write_b64 v%d, %s offset:%d" % (T + 3, vr(g.acc(nt, j), 2), j * 4096))
    a("s_branch %s" % dn)
    a.label(gl)
    for nt in range(4):
        a("v_xor_b32 v%d, %d, v%d" % (T + 3, 32 * nt, T + 2))
        a("v_add_u32 v%d, %d, v%d" % (T + 4, Q2C, T + 3))
        for j in range(9):
            conv(nt, j)
            if j < 5:
                a("ds_write_b64 v%d, %s offset:%d" % (T + 3, vr(g.acc(nt, j), 2), Q2A + j * 4096))
            elif j < 8:
                a("ds_write_b64 v%d, %s offset:%d" % (T + 4, vr(g.acc(nt, j), 2), Q2B - Q2C + (j - 5) * 4096))
            else:
                a("ds_write_b64 v%d, %s offset:0" % (T + 4, vr(g.acc(nt, j), 2)))
    a.label(dn)

def q_read(a, nq):
    T = V_T
    a("s_lshl_b32 s%d, s%d, 12" % (S_T3, S_QROW))
    a("s_add_u32 s%d, s%d, %d" % (S_T3, S_T3, (QB2 - RING) & 0xffffffff))
    for ks in range(4):
        a("v_add_u32 v%d, s%d, v%d" % (T + ks, S_T3, V_KA + ks))
    for j in range(nq):
        for ks in range(4):
            a("ds_read_b128 %s, v%d offset:%d" % (vr(A_Q + (j * 4 + ks) * 4, 4), T + ks, j * 4096))
    if nq == 1:
        for ks in range(4):
            a("v_add_u32 v%d, %d, v%d" % (T + ks, (Q2C - RING) & 0xffffffff, V_KA + ks))
        for ks in range(4):
            a("ds_read_b128 %s, v%d" % (vr(A_Q + (4 + ks) * 4, 4), T + ks))

def q2_read(a, nq):
    T = V_T
    if nq == 1:
        for i in range(16):
            a("v_mov_b32 v%d, v%d" % (A_Q + i, A_Q + 16 + i))
        return
    for j in range(2):
        a("s_add_u32 s%d, s%d, %d" % (S_T0, S_QROW, j))
        a("s_lshl_b32 s%d, s%d, 12" % (S_T1, S_T0))
        a("s_add_u32 s%d, s%d, %d" % (S_T3, S_T1, Q2B - 5 * 4096))
        a("s_cmp_lt_u32 s%d, 5" % S_T0)
        a("s_cselect_b32 s%d, s%d, s%d" % (S_T1, S_T1, S_T3))
        a("s_sub_u32 s%d, s%d, %d" % (S_T1, S_T1, RING))
        for ks in range(4):
            a("v_add_u32 v%d, s%d, v%d" % (T + ks, S_T1, V_KA + ks))
        for ks in range(4):
            a("ds_read_b128 %s, v%d" % (vr(A_Q + (j * 4 + ks) * 4, 4), T + ks))

def k_reads(slot):
    so = (slot & 3) * 16384
    return ["ds_read_b128 %s, v%d offset:%d" % (vr(A_K + (t * 4 + ks) * 4, 4), V_KA + ks, so + t * 4096) for ks in range(4) for t in range(2)]
def v_reads(slot):
    so = (slot & 3) * 16384
    return ["ds_read_b64_tr_b16 %s, v%d offset:%d" % (vr(A_V + dt * 4 + 2 * hh, 2), V_VA + dt, so + hh * 4096) for dt in range(8) for hh in range(2)]
def S_reg(sb, j, t): return A_S + sb * 16 + (j * 2 + t) * 4
def qk_mfmas(nq, sb):
    l = []
    for ks in range(4):
        for t in range(2):
            for j in range(nq):
                s = vr(S_reg(sb, j, t), 4)
                l.append("v_mfma_f32_16x16x32_bf16 %s, %s, %s, %s" % (s, vr(A_K + (t * 4 + ks) * 4, 4), vr(A_Q + (j * 4 + ks) * 4, 4), vr(A_CI + j * 4, 4) if ks == 0 else s))
    return l
def pv_mfmas(nq):
    l = []
    for dt in range(8):
        for j in range(nq):
            o = vr(A_O + (j * 8 + dt) * 4, 4)
            l.append("v_mfma_f32_16x16x32_bf16 %s, %s, %s, %s" % (o, vr(A_V + dt * 4, 4), vr(A_P + j * 4, 4), o))
        if dt == 3:
            for j in range(nq):
                l.append("v_mfma_f32_16x16x32_bf16 %s, %s, %s, %s" % (vr(A_L + j * 4, 4), vr(V_ONES, 4), vr(A_P + j * 4, 4), vr(A_L + j * 4, 4)))
    return l
def toggle(regs, n, delta):
    return ["v_add_u32 v%d, 0x%x, v%d" % (regs + i, delta & 0xffffffff, regs + i) for i in range(n)]
def max_ops(nq, sb):
    l = []
    for j in range(nq):
        S = S_reg(sb, j, 0); m = V_MX + j
        l += ["v_max3_f32 v%d, v%d, v%d, v%d" % (m, S, S + 1, S + 2),
              "v_max3_f32 v%d, v%d, v%d, v%d" % (m, m, S + 3, S + 4),
              "v_max3_f32 v%d, v%d, v%d, v%d" % (m, m, S + 5, S + 6),
              "v_max_f32 v%d, v%d, v%d" % (m, m, S + 7)]
    if nq == 2:
        l = [l[0], l[4], l[1], l[5], l[2], l[6], l[3], l[7]]
        l.append("v_max_f32 v%d, v%d, v%d" % (V_T, V_MX, V_MX + 1))
        l.append("v_cmp_lt_f32 vcc, s%d, v%d" % (S_THR, V_T))
    else:
        l.append("v_cmp_lt_f32 vcc, s%d, v%d" % (S_THR, V_MX))
    return l

def spread(a, ms, fill):
    n = len(ms); k = 0
    for i, m in enumerate(ms):
        a(m)
        want = ((i + 1) * len(fill) + n - 1) // n
        while k < min(want, len(fill)):
            a(fill[k]); k += 1
    while k < len(fill):
        a(fill[k]); k += 1

def attn_step(a, nq, u, stubs):
    sb = u & 1
    a.c("======== attn step u=%d nq=%d" % (u, nq))
    if u == 2:
        for i in toggle(V_VA, 8, 65536): a(i)
    if u == 6:
        for i in toggle(V_VA, 8, -65536): a(i)
    a("s_waitcnt lgkmcnt(0)")
    if "fine" in ADBG:
        a("s_sub_u32 s82, s78, s76"); a("s_add_u32 s84, s84, s82")
        a("s_sub_u32 s82, s80, s78"); a("s_add_u32 s85, s85, s82")
        a("s_mov_b32 s83, s80")
        a("s_memtime s[76:77]")
    vl = v_reads((u + 2) % 8)
    ex = []
    for j in range(nq):
        S = S_reg(sb, j, 0)
        for i in range(8):
            ex.append("v_exp_f32 v%d, v%d" % (S + i, S + i))
    cv = []
    for j in range(nq):
        S = S_reg(sb, j, 0)
        for i in range(4):
            cv.append("v_cvt_pk_bf16_f32 v%d, v%d, v%d" % (A_P + j * 4 + i, S + 2 * i, S + 2 * i + 1))
    fill = []
    vi = 0
    for i in range(len(ex)):
        fill.append(ex[i])
        nv = (len(vl) * (i + 1) + len(ex) - 1) // len(ex)
        while vi < min(nv, len(vl)):
            fill.append(vl[vi]); vi += 1
        if i % 2 == 1 and i >= 3:
            fill.append(cv[(i - 3) // 2])
    fill.append("s_nop 0")
    fill.append(cv[-1])
    if "novalu" in ADBG: fill = vl
    spread(a, qk_mfmas(nq, sb ^ 1), fill)
    if "fine" in ADBG:
        a("s_memtime s[78:79]")
    a("s_waitcnt lgkmcnt(0)")
    if "fine" in ADBG:
        a("s_sub_u32 s82, s76, s83"); a("s_add_u32 s86, s86, s82")
        a("s_memtime s[88:89]")
    a("s_barrier")
    if "fine" in ADBG:
        a("s_memtime s[80:81]")
        a("s_waitcnt lgkmcnt(0)")
        a("s_sub_u32 s82, s88, s78"); a("s_add_u32 s87, s87, s82")
    tg = []
    if u == 0: tg = toggle(V_KA, 4, 65536)
    if u == 4: tg = toggle(V_KA, 4, -65536)
    for i in tg: a(i)
    if u == 7:
        a("s_cmp_eq_u32 s%d, 3" % S_CNT)
        a("s_cselect_b32 s%d, 0x7f800000, s%d" % (S_THR, S_THR))
    kr = k_reads((u + 4) % 8)
    mx = max_ops(nq, sb ^ 1)
    pv = pv_mfmas(nq)
    n = len(pv)
    k = 0; q = 0
    for i, m in enumerate(pv):
        a(m)
        if k < len(kr):
            a(kr[k]); k += 1
            if nq == 1 and k < len(kr): pass
        elif q < len(mx) - 1:
            a(mx[q]); q += 1
            if len(mx) - 1 - q > n - 1 - i:
                a(mx[q]); q += 1
    while k < len(kr):
        a(kr[k]); k += 1
    while q < len(mx):
        a(mx[q]); q += 1
    rare = a.newlabel("rare"); back = a.newlabel("back")
    a("s_cbranch_vccnz %s" % rare)
    a.label(back)
    stubs.append((rare, back, sb ^ 1))

def attn_rare_sub(a, nq, sb, label):
    a.label(label)
    T = V_T
    a("s_nop 7")
    for j in range(nq):
        S = S_reg(sb, j, 0); m = V_MX + j
        a("v_xor_b32 v%d, 16, v%d" % (T + 1, V_LANE))
        a("v_lshlrev_b32 v%d, 2, v%d" % (T + 1, T + 1))
        a("ds_bpermute_b32 v%d, v%d, v%d" % (T, T + 1, m))
        a("s_waitcnt lgkmcnt(0)")
        a("v_max_f32 v%d, v%d, v%d" % (m, m, T))
        a("v_xor_b32 v%d, 32, v%d" % (T + 1, V_LANE))
        a("v_lshlrev_b32 v%d, 2, v%d" % (T + 1, T + 1))
        a("ds_bpermute_b32 v%d, v%d, v%d" % (T, T + 1, m))
        a("s_waitcnt lgkmcnt(0)")
        a("v_max_f32 v%d, v%d, v%d" % (m, m, T))
        a("v_cmp_lt_f32 vcc, s%d, v%d" % (S_LO, m))
        a("s_nop 1")
        a("v_cndmask_b32 v%d, 0, v%d, vcc" % (m, m))
        for i in range(8):
            a("v_sub_f32 v%d, v%d, v%d" % (S + i, S + i, m))
        for i in range(4):
            a("v_sub_f32 v%d, v%d, v%d" % (A_CI + j * 4 + i, A_CI + j * 4 + i, m))
        a("v_max_f32 v%d, 0, v%d" % (T, m))
        a("v_sub_f32 v%d, 0, v%d" % (T, T))
        a("v_exp_f32 v%d, v%d" % (T, T))
        a("s_nop 0")
        for i in range(4):
            a("v_mul_f32 v%d, v%d, v%d" % (A_L + j * 4 + i, A_L + j * 4 + i, T))
        for i in range(32):
            a("v_mul_f32 v%d, v%d, v%d" % (A_O + j * 32 + i, A_O + j * 32 + i, T))
    if "fine" in ADBG: a("s_add_u32 s90, s90, 32")
    a("s_mov_b32 s%d, 0x%08x" % (S_THR, f32bits(8.0)))
    a("s_mov_b32 s%d, s%d" % (S_LO, S_THR))
    a("s_nop 1")
    a("s_setpc_b64 s[%d:%d]" % (S_RET, S_RET + 1))

def attn_epilogue(a, nq, stf):
    T = V_T
    a("v_lshrrev_b32 v%d, 4, v%d" % (T, V_LANE))
    a("v_and_b32 v%d, 15, v%d" % (T + 1, V_LANE))
    a("v_and_b32 v%d, 1, v%d" % (T + 2, T))
    a("v_lshlrev_b32 v%d, 5, v%d" % (T + 2, T + 2))
    a("v_lshrrev_b32 v%d, 1, v%d" % (T, T))
    a("v_lshl_add_u32 v%d, v%d, 4, v%d" % (T + 2, T, T + 2))
    a("v_lshl_add_u32 v%d, v%d, 13, v%d" % (T + 1, T + 1, T + 2))
    a("s_mul_i32 s%d, s%d, %d" % (S_T0, S_QROW, 16 * 8192))
    for j in range(nq):
        a("v_rcp_f32 v%d, v%d" % (V_MX + j, A_L + j * 4))
    a("s_nop 0")
    for j in range(nq):
        if j == 1:
            a("s_add_u32 s%d, s%d, %d" % (S_T0, S_T0, 16 * 8192))
        for dp in range(4):
            o = A_O + (j * 8 + 2 * dp) * 4
            for r in range(8):
                a("v_mul_f32 v%d, v%d, v%d" % (o + r, o + r, V_MX + j))
            a("v_cvt_pk_bf16_f32 v%d, v%d, v%d" % (o, o, o + 1))
            a("v_cvt_pk_bf16_f32 v%d, v%d, v%d" % (o + 1, o + 2, o + 3))
            a("v_cvt_pk_bf16_f32 v%d, v%d, v%d" % (o + 2, o + 4, o + 5))
            a("v_cvt_pk_bf16_f32 v%d, v%d, v%d" % (o + 3, o + 6, o + 7))
            a("s_nop 1")
            a("v_permlane16_swap_b32 v%d, v%d" % (o, o + 2))
            a("v_permlane16_swap_b32 v%d, v%d" % (o + 1, o + 3))
            a("buffer_store_dwordx4 %s, v%d, s[%d:%d], s%d offen offset:%d%s" % (vr(o, 4), T + 1, SRD_O, SRD_O + 3, S_T0, dp * 64, stf))

def srd_w(a):
    a("s_lshl_b32 s%d, s%d, 8" % (S_T0, S_HEAD))
    a("s_add_u32 s%d, s%d, s%d" % (SRD_W, S_PTR + 6, S_T0))
    a("s_addc_u32 s%d, s%d, 0" % (SRD_W + 1, S_PTR + 7))
    a("s_sub_u32 s%d, 8388608, s%d" % (SRD_W + 2, S_T0))
    a("s_mov_b32 s%d, 0x20000" % (SRD_W + 3))
def srd_kv(a):
    a("s_lshl_b32 s%d, s%d, 5" % (S_T0, S_B))
    a("s_add_u32 s%d, s%d, s%d" % (S_T0, S_T0, S_HEAD))
    a("s_lshl_b32 s%d, s%d, 18" % (S_T0, S_T0))
    a("s_add_u32 s%d, s%d, s%d" % (SRD_KV, S_KVB, S_T0))
    a("s_addc_u32 s%d, s%d, 0" % (SRD_KV + 1, S_KVB + 1))
    a("s_mov_b32 s%d, 262144" % (SRD_KV + 2))
    a("s_mov_b32 s%d, 0x20000" % (SRD_KV + 3))
def srd_o(a):
    a("s_mul_i32 s%d, s%d, %d" % (S_T0, S_BLK, 1152 * 8192))
    a("s_mul_i32 s%d, s%d, %d" % (S_T1, S_B, 144 * 8192))
    a("s_add_u32 s%d, s%d, s%d" % (S_T0, S_T0, S_T1))
    a("s_lshl_b32 s%d, s%d, 8" % (S_T1, S_HEAD))
    a("s_add_u32 s%d, s%d, s%d" % (S_T0, S_T0, S_T1))
    a("s_add_u32 s%d, s%d, s%d" % (SRD_O, S_WS, S_T0))
    a("s_addc_u32 s%d, s%d, 0" % (SRD_O + 1, S_WS + 1))
    a("s_mov_b32 s%d, %d" % (SRD_O + 2, 143 * 8192 + 256))
    a("s_mov_b32 s%d, 0x20000" % (SRD_O + 3))

def entry_common(a, done):
    a("s_cmp_ge_u32 s2, 256")
    a("s_cbranch_scc1 %s" % done)
    a("v_and_b32 v%d, 63, v0" % V_LANE)
    a("v_lshrrev_b32 v%d, 6, v0" % V_T)
    a("s_nop 0")
    a("v_readfirstlane_b32 s%d, v%d" % (S_WAVE, V_T))

def attention_heads(a, nq, tagc, stf):
    opts = OPTS
    hl = "L_k1_head%s" % tagc
    a.label(hl)
    for r in k_reads(2): a(r)
    srd_o(a)
    a("s_add_u32 s%d, s%d, 4" % (S_HEAD, S_HEAD))
    for j in range(nq):
        for i in range(32):
            a("v_mov_b32 v%d, 0" % (A_O + j * 32 + i))
        for i in range(4):
            a("v_mov_b32 v%d, 0" % (A_L + j * 4 + i))
            a("v_mov_b32 v%d, 0" % (A_CI + j * 4 + i))
    a("s_mov_b32 s%d, 0xff800000" % S_THR)
    a("s_mov_b32 s%d, 0xff800000" % S_LO)
    a("s_waitcnt lgkmcnt(0)")
    for m in qk_mfmas(nq, 0): a(m)
    for r in k_reads(3): a(r)
    a("s_nop 7")
    for m in max_ops(nq, 0): a(m)
    subs = ["L_k1_rsub%s_%d" % (tagc, sb) for sb in range(2)]
    a("s_call_b64 s[%d:%d], %s" % (S_RET, S_RET + 1, subs[0]))
    prof(a, 2, S_ROUND)
    if "fine" in ADBG:
        for r in (84, 85, 86, 87, 90): a("s_mov_b32 s%d, 0" % r)
        a("s_memtime s[76:77]"); a("s_memtime s[78:79]"); a("s_memtime s[80:81]")
    stubs = []
    loop = a.newlabel("attn_loop")
    a("s_mov_b32 s%d, 0" % S_CNT)
    a.label(loop)
    for u in range(8):
        attn_step(a, nq, u, stubs)
    a("s_add_u32 s%d, s%d, 1" % (S_CNT, S_CNT))
    a("s_cmp_lt_u32 s%d, 4" % S_CNT)
    a("s_cbranch_scc1 %s" % loop)
    prof(a, 3, S_ROUND)
    if "fine" in ADBG:
        for k, r in enumerate((84, 85, 86, 90)):
            a("v_mov_b32 v%d, s%d" % (V_T + 5, r))
            a("s_lshl_b32 s%d, s%d, 6" % (S_STAMP + 1, S_ROUND))
            a("s_mov_b64 exec, 1")
            a("buffer_store_dword v%d, v%d, s[%d:%d], s%d offen offset:%d" % (V_T + 5, V_PROF, S_PROF, S_PROF + 3, S_STAMP + 1, (10 + k) * 4))
            a("s_mov_b64 exec, -1")
    nq2 = a.newlabel("noq2")
    a("s_cmp_eq_u32 s%d, 1" % S_ROUND)
    a("s_cbranch_scc1 %s" % nq2)
    a("s_waitcnt lgkmcnt(0)")
    q2_read(a, nq)
    a.label(nq2)
    attn_epilogue(a, nq, stf)
    prof(a, 4, S_ROUND)
    prof(a, 5, S_ROUND, True)
    a("s_add_u32 s%d, s%d, 1" % (S_ROUND, S_ROUND))
    a("s_cmp_lt_u32 s%d, 2" % S_ROUND)
    a("s_cbranch_scc1 %s" % hl)
    a("s_endpgm")
    for (r, b, sb) in stubs:
        a.label(r)
        a("s_call_b64 s[%d:%d], %s" % (S_RET, S_RET + 1, subs[sb]))
        a("s_branch %s" % b)
    for sb in range(2):
        attn_rare_sub(a, nq, sb, subs[sb])

def kernel_k1(a, name):
    global ADBG
    opts = OPTS
    ADBG = opts.get("adbg", "")
    ntx = opts.get("nt_xw", "")
    ntkv = opts.get("nt_kv", " nt")
    stf = opts.get("st_o", "")
    D = int(opts.get("kvd", "8"))
    a.lines.append(".p2align 8")
    a.lines.append(".type %s,@function" % name)
    a.label(name)
    done = "L_k1_done"
    entry_common(a, done)
    a("s_and_b32 s%d, s2, 7" % S_T0)
    a("s_lshr_b32 s%d, s2, 3" % S_T1)
    a("s_lshr_b32 s%d, s%d, 2" % (S_BLK, S_T0))
    a("s_and_b32 s%d, s%d, 3" % (S_T2, S_T0))
    a("s_and_b32 s%d, s%d, 7" % (S_B, S_T1))
    a("s_lshr_b32 s%d, s%d, 3" % (S_T3, S_T1))
    a("s_lshl_b32 s%d, s%d, 3" % (S_HEAD, S_T2))
    a("s_add_u32 s%d, s%d, s%d" % (S_HEAD, S_HEAD, S_T3))
    r1 = opts.get("rot1", "b")
    if r1 == "full":
        a("s_lshl_b32 s%d, s%d, 1" % (S_ROT, S_B))
        a("s_lshl_b32 s%d, s%d, 2" % (S_T3, S_T3))
        a("s_add_u32 s%d, s%d, s%d" % (S_ROT, S_ROT, S_T3))
        a("s_and_b32 s%d, s%d, 15" % (S_ROT, S_ROT))
    elif r1 == "0":
        a("s_mov_b32 s%d, 0" % S_ROT)
    elif r1 == "b":
        a("s_mov_b32 s%d, s%d" % (S_ROT, S_B))
    a("s_mul_i32 s%d, s%d, 40" % (S_T0, S_BLK))
    a("s_add_u32 s%d, s0, s%d" % (S_PTR2, S_T0))
    a("s_addc_u32 s%d, s1, 0" % (S_PTR2 + 1))
    a("s_load_dwordx8 s[%d:%d], s[%d:%d], 0" % (S_PTR, S_PTR + 7, S_PTR2, S_PTR2 + 1))
    a("s_load_dwordx2 s[%d:%d], s[0:1], 96" % (S_WS, S_WS + 1))
    a("s_mov_b32 s%d, 0x%08x" % (S_C, f32bits(128 ** -0.5 * 1.4426950408889634)))
    a("s_mov_b32 s%d, 0" % S_ROUND)
    a("s_waitcnt lgkmcnt(0)")
    prof_setup(a)
    prof(a, 8, None, True)
    prof(a, 9)
    a("s_cmp_ge_u32 s%d, 5" % S_WAVE)
    a("s_cbranch_scc1 L_k1_loader")
    a("s_mov_b32 s%d, 0x3f803f80" % S_T0)
    for i in range(4):
        a("v_mov_b32 v%d, s%d" % (V_ONES + i, S_T0))
    a("s_lshl_b32 s%d, s%d, 1" % (S_QROW, S_WAVE))
    prof(a, 0)
    a("s_cmp_eq_u32 s%d, 4" % S_WAVE)
    a("s_cbranch_scc1 L_k1_w4")
    g = GemmB(4, 16, BUF2)
    def nt0(a):
        a("s_and_b32 s%d, s%d, 1" % (S_T0, S_WAVE))
        a("s_lshl_b32 s%d, s%d, 2" % (S_T0, S_T0))
    def ex(a):
        a("s_lshr_b32 s%d, s%d, 1" % (S_T1, S_WAVE))
        a("s_lshl_b32 s%d, s%d, 14" % (S_T1, S_T1))
        a("s_add_u32 s%d, s%d, %d" % (S_T1, S_T1, XT))
    g.lane_regs(a, nt0, ex)
    g.zero_acc(a)
    a("s_barrier")
    prof(a, 6)
    g.main(a)
    prof(a, 1)
    a("s_barrier")
    q_write(a, g)
    for nq, tagc in ((2, "B"), (1, "S")):
        if nq == 1:
            a.label("L_k1_w4")
            for s in range(17):
                a("s_barrier")
            prof(a, 1)
        attn_lane_regs(a)
        a("s_waitcnt lgkmcnt(0)")
        a("s_barrier")
        q_read(a, nq)
        a("s_waitcnt lgkmcnt(0)")
        a("s_barrier")
        attention_heads(a, nq, tagc, stf)
    a.label("L_k1_loader")
    if opts.get("lprio", "1") == "1": a("s_setprio 3")
    a("s_cmp_eq_u32 s%d, 7" % S_WAVE)
    a("s_cbranch_scc1 L_k1_lb")
    lw = LoadW(16, 8192, ntx, 16, BUF2)
    a("s_sub_u32 s%d, s%d, 5" % (S_T2, S_WAVE))
    a("s_cmp_eq_u32 s%d, 0" % S_T2)
    a("s_cselect_b32 s%d, s%d, s%d" % (S_KVB, S_PTR + 2, S_PTR + 4))
    a("s_cselect_b32 s%d, s%d, s%d" % (S_KVB + 1, S_PTR + 3, S_PTR + 5))
    a("s_lshl_b32 s%d, s%d, 13" % (S_KVL, S_T2))
    srd_kv(a)
    a("s_lshl_b32 s%d, s%d, 2" % (S_T3, S_T2))
    a("s_add_u32 s%d, s%d, s%d" % (S_HEAD, S_HEAD, S_T3))
    srd_w(a)
    a("s_sub_u32 s%d, s%d, s%d" % (S_HEAD, S_HEAD, S_T3))
    lw.setup(a, S_T2)
    kv_lane_regs(a, S_T2)
    a("s_mov_b32 s%d, 0" % S_KVOFF)
    a("s_mov_b32 s%d, s%d" % (S_KIDX, S_ROT))
    a("s_branch L_k1_la")
    for which in ("B", "A"):
        ld = lw if which == "A" else LoadX(16, 2048, 18, ntx, BUF2)
        if which == "B":
            a.label("L_k1_lb")
            a("s_mul_i32 s%d, s%d, 294912" % (S_T0, S_B))
            a("s_add_u32 s%d, s%d, s%d" % (SRD_X, S_PTR, S_T0))
            a("s_addc_u32 s%d, s%d, 0" % (SRD_X + 1, S_PTR + 1))
            a("s_mov_b32 s%d, 294912" % (SRD_X + 2))
            a("s_mov_b32 s%d, 0x20000" % (SRD_X + 3))
            a("s_mov_b32 s%d, 0" % S_T2)
            ld.setup(a, S_T2)
            a("s_mov_b32 s%d, s%d" % (S_KIDX, S_ROT))
        else:
            a.label("L_k1_la")
        vt = VmTrack()
        extra = {}
        if which == "A":
            def kv3(a, vt):
                for n in range(3):
                    kv_issue(a, (n + 2) % 8, ntkv); vt.issue(("blk", n), 8)
            extra[13] = kv3
        else:
            def misc(a, vt):
                a("s_add_u32 s%d, s%d, %d" % (SRD_F, S_WS, WS_FLAG))
                a("s_addc_u32 s%d, s%d, 0" % (SRD_F + 1, S_WS + 1))
                a("s_mov_b32 s%d, 4096" % (SRD_F + 2))
                a("s_mov_b32 s%d, 0x20000" % (SRD_F + 3))
                a("s_lshl_b32 s%d, s2, 4" % S_T0)
                a("v_lshlrev_b32 v%d, 2, v%d" % (V_T, V_LANE))
                a("v_mov_b32 v%d, 0" % (V_T + 1))
                a("s_mov_b64 exec, 15")
                a("buffer_store_dword v%d, v%d, s[%d:%d], s%d offen" % (V_T + 1, V_T, SRD_F, SRD_F + 3, S_T0))
                a("s_mov_b64 exec, -1")
                vt.issue(("z", 0), 1)
                a("s_lshr_b32 s%d, s2, 7" % S_T0)
                a("s_mul_i32 s%d, s%d, 40" % (S_T0, S_T0))
                a("s_add_u32 s%d, s0, s%d" % (S_PTR2, S_T0))
                a("s_addc_u32 s%d, s1, 0" % (S_PTR2 + 1))
                a("s_load_dwordx2 s[%d:%d], s[%d:%d], 32" % (S_KVB, S_KVB + 1, S_PTR2, S_PTR2 + 1))
                a("s_and_b32 s%d, s2, 127" % S_T0)
                a("s_lshl_b32 s%d, s%d, 16" % (S_T0, S_T0))
                a("v_lshlrev_b32 v%d, 6, v%d" % (L_OFF + 6, V_LANE))
                a("s_waitcnt lgkmcnt(0)")
                a("s_add_u32 s%d, s%d, s%d" % (SRD_P, S_KVB, S_T0))
                a("s_addc_u32 s%d, s%d, 0" % (SRD_P + 1, S_KVB + 1))
                a("s_mov_b32 s%d, 65536" % (SRD_P + 2))
                a("s_mov_b32 s%d, 0x20000" % (SRD_P + 3))
            extra[13] = misc
        prof(a, 6)
        loader_gemm_line(a, ld, 16, 3, vt, extra)
        a("s_barrier")
        a("s_barrier")
        if which == "A":
            a("s_waitcnt vmcnt(8)")
        a("s_barrier")
        if which == "A":
            for nb in range(3, D):
                kv_issue(a, (nb + 2) % 8, ntkv)
        order = list(range(D))
        vms = {}
        for n in range(64):
            need = n + 2
            vms[n] = None
            if need <= 63:
                vms[n] = min(63, (len(order) - 1 - order.index(need)) * 8)
            if n + D <= 63: order.append(n + D)
        loop = a.newlabel("lattn")
        a("s_mov_b32 s%d, 0" % S_CNT)
        a.label(loop)
        n_sw = 32 - D
        for u in range(8):
            if which == "A":
                vv = set(vms[8 * it + u] for it in range(7))
                assert len(vv) == 1, vv
                a("s_waitcnt vmcnt(%d)" % vv.pop())
            a("s_barrier")
            if which == "A":
                if u == n_sw % 8:
                    sk = a.newlabel("sk")
                    a("s_cmp_eq_u32 s%d, %d" % (S_CNT, n_sw // 8))
                    a("s_cbranch_scc0 %s" % sk)
                    a("s_add_u32 s%d, s%d, 4" % (S_HEAD, S_HEAD))
                    srd_kv(a)
                    a("s_mov_b32 s%d, 0" % S_KVOFF)
                    a.label(sk)
                kv_issue(a, (u + D + 2) % 8, ntkv)
        a("s_add_u32 s%d, s%d, 1" % (S_CNT, S_CNT))
        a("s_cmp_lt_u32 s%d, 7" % S_CNT)
        a("s_cbranch_scc1 %s" % loop)
        for n in range(56, 64):
            if which == "A" and vms[n] is not None:
                a("s_waitcnt vmcnt(%d)" % vms[n])
            a("s_barrier")
            if which == "A" and n + D <= 63:
                kv_issue(a, (n + D + 2) % 8, ntkv)
            if which == "B" and n == 64 - D and opts.get("wopf", "1") == "1":
                for i in range(16):
                    a("s_mov_b32 s%d, %d" % (S_T0, i * 4096))
                    a("buffer_load_dword v%d, v%d, s[%d:%d], s%d offen" % (L_OFF + 7, L_OFF + 6, SRD_P, SRD_P + 3, S_T0))
        a("s_endpgm")
    a.label(done)
    a("s_endpgm")

def kernel_k2(a, name):
    opts = OPTS
    XSC = " sc1" if opts.get("xsc", "1") == "1" else " sc0 sc1"
    ntx = opts.get("nt_o", "")
    a.lines.append(".p2align 8")
    a.lines.append(".type %s,@function" % name)
    a.label(name)
    done = "L_k2_done"
    S_S = S_ROUND
    entry_common(a, done)
    a("s_and_b32 s%d, s2, 7" % S_T0)
    a("s_lshr_b32 s%d, s2, 3" % S_T1)
    a("s_lshr_b32 s%d, s%d, 2" % (S_BLK, S_T0))
    a("s_lshr_b32 s%d, s%d, 1" % (S_S, S_T0))
    a("s_and_b32 s%d, s%d, 1" % (S_S, S_S))
    a("s_and_b32 s%d, s%d, 1" % (S_T2, S_T0))
    a("s_lshl_b32 s%d, s%d, 2" % (S_T2, S_T2))
    a("s_and_b32 s%d, s%d, 3" % (S_B, S_T1))
    a("s_add_u32 s%d, s%d, s%d" % (S_B, S_B, S_T2))
    a("s_lshr_b32 s%d, s%d, 2" % (S_HEAD, S_T1))
    r2 = opts.get("rot2", "0")
    if r2 == "0":
        a("s_mov_b32 s%d, 0" % S_ROT)
    elif r2 == "j":
        a("s_mov_b32 s%d, s%d" % (S_ROT, S_HEAD))
    a("s_mul_i32 s%d, s%d, 40" % (S_T0, S_BLK))
    a("s_add_u32 s%d, s0, s%d" % (S_PTR2, S_T0))
    a("s_addc_u32 s%d, s1, 0" % (S_PTR2 + 1))
    a("s_load_dwordx2 s[%d:%d], s[%d:%d], 32" % (S_PTR, S_PTR + 1, S_PTR2, S_PTR2 + 1))
    a("s_load_dwordx2 s[%d:%d], s[0:1], 96" % (S_WS, S_WS + 1))
    a("s_load_dwordx2 s[%d:%d], s[0:1], 80" % (S_OUT, S_OUT + 1))
    a("s_waitcnt lgkmcnt(0)")
    prof_setup(a, 256 * 16 * 64 * 4)
    prof(a, 0)
    prof(a, 8, None, True)
    a("s_cmp_ge_u32 s%d, 4" % S_WAVE)
    a("s_cbranch_scc1 L_k2_loader")
    g = GemmB(2, 32, BUF1)
    def nt0(a):
        a("s_lshl_b32 s%d, s%d, 1" % (S_T0, S_WAVE))
    def ex(a):
        a("s_mov_b32 s%d, %d" % (S_T1, XT))
    g.lane_regs(a, nt0, ex)
    a("s_mul_i32 s%d, s%d, %d" % (S_T0, S_B, 144 * 4096))
    a("s_lshl_b32 s%d, s%d, 11" % (S_T1, S_BLK))
    a("s_add_u32 s%d, s%d, s%d" % (S_T0, S_T0, S_T1))
    a("s_lshl_b32 s%d, s%d, 8" % (S_T1, S_HEAD))
    a("s_add_u32 s%d, s%d, s%d" % (S_T0, S_T0, S_T1))
    a("s_add_u32 s%d, s%d, s%d" % (SRD_O, S_OUT, S_T0))
    a("s_addc_u32 s%d, s%d, 0" % (SRD_O + 1, S_OUT + 1))
    a("s_mov_b32 s%d, %d" % (SRD_O + 2, 143 * 4096 + 256))
    a("s_mov_b32 s%d, 0x20000" % (SRD_O + 3))
    a("s_lshl_b32 s%d, s%d, 3" % (S_T2, S_BLK))
    a("s_add_u32 s%d, s%d, s%d" % (S_T2, S_T2, S_B))
    a("s_lshl_b32 s%d, s%d, 3" % (S_T2, S_T2))
    a("s_add_u32 s%d, s%d, s%d" % (S_T2, S_T2, S_HEAD))
    a("s_lshr_b32 s%d, s%d, 1" % (S_T1, S_WAVE))
    a("s_xor_b32 s%d, s%d, 1" % (S_T3, S_T1))
    a("s_lshl_b32 s%d, s%d, 1" % (S_T2, S_T2))
    a("s_add_u32 s%d, s%d, s%d" % (S_T2, S_T2, S_T3))
    a("s_lshl_b32 s%d, s%d, 1" % (S_T2, S_T2))
    a("s_and_b32 s%d, s%d, 1" % (S_T0, S_WAVE))
    a("s_add_u32 s%d, s%d, s%d" % (S_QROW, S_T2, S_T0))
    a("s_xor_b32 s%d, s%d, s%d" % (S_LO, S_T1, S_S))
    a("s_mul_i32 s%d, s%d, 18432" % (S_T0, S_QROW))
    a("s_add_u32 s%d, s%d, %d" % (S_T0, S_T0, WS_PART))
    a("s_add_u32 s%d, s%d, s%d" % (SRD_P, S_WS, S_T0))
    a("s_addc_u32 s%d, s%d, 0" % (SRD_P + 1, S_WS + 1))
    a("s_mov_b32 s%d, 18432" % (SRD_P + 2))
    a("s_mov_b32 s%d, 0x20000" % (SRD_P + 3))
    a("s_add_u32 s%d, s%d, %d" % (SRD_F, S_WS, WS_FLAG))
    a("s_addc_u32 s%d, s%d, 0" % (SRD_F + 1, S_WS + 1))
    a("s_mov_b32 s%d, 4096" % (SRD_F + 2))
    a("s_mov_b32 s%d, 0x20000" % (SRD_F + 3))
    g.zero_acc(a)
    a("s_barrier")
    prof(a, 6)
    g.main(a)
    prof(a, 1)
    T = V_T
    a("v_lshlrev_b32 v%d, 4, v%d" % (T, V_LANE))
    a("s_lshl_b32 s%d, s%d, 2" % (S_T0, S_QROW))
    a("v_mov_b32 v%d, s%d" % (T + 1, S_T0))
    a("s_cmp_eq_u32 s%d, 0" % S_LO)
    a("s_cbranch_scc1 L_k2_own")
    a("s_nop 7")
    tiles = [(nt, j) for j in range(9) for nt in range(2)]
    for k, (nt, j) in enumerate(tiles):
        a("s_mov_b32 s%d, %d" % (S_T1, k * 1024))
        a("buffer_store_dwordx4 %s, v%d, s[%d:%d], s%d offen%s" % (vr(g.acc(nt, j), 4), T, SRD_P, SRD_P + 3, S_T1, XSC))
    a("s_waitcnt vmcnt(0)")
    a("v_mov_b32 v%d, 1" % (T + 2))
    a("s_mov_b64 exec, 1")
    a("buffer_store_dword v%d, v%d, s[%d:%d], 0 offen%s" % (T + 2, T + 1, SRD_F, SRD_F + 3, XSC))
    a("s_mov_b64 exec, -1")
    a("s_endpgm")
    a.label("L_k2_own")
    a("v_lshrrev_b32 v%d, 4, v%d" % (T + 3, V_LANE))
    a("v_and_b32 v%d, 15, v%d" % (T + 4, V_LANE))
    a("v_lshlrev_b32 v%d, 3, v%d" % (T + 3, T + 3))
    a("v_lshl_add_u32 v%d, v%d, 12, v%d" % (T + 3, T + 4, T + 3))
    a("s_lshl_b32 s%d, s%d, 6" % (S_T0, S_WAVE))
    a("v_add_u32 v%d, s%d, v%d" % (T + 3, S_T0, T + 3))
    a("s_mov_b32 s%d, 0" % S_CNT)
    a.label("L_k2_poll")
    a("buffer_load_dword v%d, v%d, s[%d:%d], 0 offen%s" % (T + 2, T + 1, SRD_F, SRD_F + 3, XSC))
    a("s_waitcnt vmcnt(0)")
    a("v_readfirstlane_b32 s%d, v%d" % (S_T0, T + 2))
    a("s_add_u32 s%d, s%d, 1" % (S_CNT, S_CNT))
    a("s_cmp_eq_u32 s%d, 1" % S_T0)
    a("s_cbranch_scc1 L_k2_got")
    a("s_sleep 1")
    a("s_cmp_lt_u32 s%d, 4000000" % S_CNT)
    a("s_cbranch_scc1 L_k2_poll")
    a.label("L_k2_got")
    PB = 100
    for k in range(18):
        a("s_mov_b32 s%d, %d" % (S_T1, k * 1024))
        a("buffer_load_dwordx4 %s, v%d, s[%d:%d], s%d offen%s" % (vr(PB + k * 4, 4), T, SRD_P, SRD_P + 3, S_T1, XSC))
    for k, (nt, j) in enumerate(tiles):
        acc = g.acc(nt, j)
        a("s_waitcnt vmcnt(17)")
        for r in range(4):
            a("v_add_f32 v%d, v%d, v%d" % (acc + r, acc + r, PB + k * 4 + r))
        a("v_cvt_pk_bf16_f32 v%d, v%d, v%d" % (acc, acc, acc + 1))
        a("v_cvt_pk_bf16_f32 v%d, v%d, v%d" % (acc + 1, acc + 2, acc + 3))
        a("s_mov_b32 s%d, %d" % (S_T1, j * 16 * 4096))
        a("buffer_store_dwordx2 %s, v%d, s[%d:%d], s%d offen offset:%d" % (vr(acc, 2), T + 3, SRD_O, SRD_O + 3, S_T1, nt * 32))
    prof(a, 2)
    prof(a, 9, None, True)
    a("s_endpgm")
    a.label("L_k2_loader")
    if opts.get("lprio", "1") == "1": a("s_setprio 3")
    a("s_mul_i32 s%d, s%d, %d" % (S_T0, S_BLK, 1152 * 8192))
    a("s_mul_i32 s%d, s%d, %d" % (S_T1, S_B, 144 * 8192))
    a("s_add_u32 s%d, s%d, s%d" % (S_T0, S_T0, S_T1))
    a("s_lshl_b32 s%d, s%d, 12" % (S_T1, S_S))
    a("s_add_u32 s%d, s%d, s%d" % (S_T0, S_T0, S_T1))
    a("s_add_u32 s%d, s%d, s%d" % (SRD_X, S_WS, S_T0))
    a("s_addc_u32 s%d, s%d, 0" % (SRD_X + 1, S_WS + 1))
    a("s_mov_b32 s%d, %d" % (SRD_X + 2, 143 * 8192 + 4096))
    a("s_mov_b32 s%d, 0x20000" % (SRD_X + 3))
    a("s_lshl_b32 s%d, s%d, 8" % (S_T0, S_HEAD))
    a("s_lshl_b32 s%d, s%d, 22" % (S_T1, S_S))
    a("s_add_u32 s%d, s%d, s%d" % (S_T0, S_T0, S_T1))
    a("s_add_u32 s%d, s%d, s%d" % (SRD_W, S_PTR, S_T0))
    a("s_addc_u32 s%d, s%d, 0" % (SRD_W + 1, S_PTR + 1))
    a("s_mov_b32 s%d, %d" % (SRD_W + 2, 2047 * 2048 + 256))
    a("s_mov_b32 s%d, 0x20000" % (SRD_W + 3))
    a("s_mov_b32 s%d, s%d" % (S_KIDX, S_ROT))
    a("s_cmp_ge_u32 s%d, 6" % S_WAVE)
    a("s_cbranch_scc1 L_k2_lx")
    for which in ("W", "X"):
        if which == "W":
            ld = LoadW(32, 2048, ntx, 8, BUF1)
            a("s_sub_u32 s%d, s%d, 4" % (S_T2, S_WAVE))
        else:
            a.label("L_k2_lx")
            ld = LoadX(32, 8192, 9, ntx, BUF1)
            a("s_sub_u32 s%d, s%d, 6" % (S_T2, S_WAVE))
            a("s_mul_i32 s%d, s%d, 9" % (S_T2, S_T2))
        ld.setup(a, S_T2)
        loader_gemm_line(a, ld, 32, 4, VmTrack(), None)
        a("s_endpgm")
    a.label(done)
    a("s_endpgm")

def descriptor(name, vgpr, sgpr):
    return """.section .rodata,"a"
.p2align 6
.amdhsa_kernel %s
  .amdhsa_next_free_vgpr %d
  .amdhsa_next_free_sgpr %d
  .amdhsa_accum_offset %d
  .amdhsa_group_segment_fixed_size 0
  .amdhsa_kernarg_size 104
  .amdhsa_user_sgpr_count 2
  .amdhsa_user_sgpr_kernarg_segment_ptr 1
  .amdhsa_system_sgpr_workgroup_id_x 1
.end_amdhsa_kernel
""" % (name, vgpr, sgpr, vgpr)

def build():
    a = Asm()
    k1 = NAME + "_kernel"
    k2 = "oproj_kernel"
    hdr = []
    hdr.append("; @launch kernel=%s grid=(256,1,1) block=(512,1,1) lds=163840" % k1)
    hdr.append("; @launch kernel=%s grid=(256,1,1) block=(512,1,1) lds=%d" % (k2, 4 * STAGE1))
    hdr.append('.amdgcn_target "amdgcn-amd-amdhsa--gfx950"')
    hdr.append(".text")
    hdr.append(".globl %s" % k1)
    hdr.append(".globl %s" % k2)
    kernel_k1(a, k1)
    kernel_k2(a, k2)
    txt = "\n".join(hdr) + "\n" + "\n".join(a.lines) + "\n"
    txt += descriptor(k1, 244, 96)
    txt += descriptor(k2, 244, 96)
    return txt

if __name__ == "__main__":
    out = sys.argv[1] if len(sys.argv) > 1 else "cdna_kernels/%s.s" % NAME
    for o in sys.argv[2:]:
        k, v = o.split("=")
        OPTS[k] = v.replace("_", " ") if k.startswith(("nt_", "st_")) else v
    open(out, "w").write(build())
    print("wrote", out)
```

```python
import sys, struct

NAME = "concat_heads__mha_block_cached__gqa_block_cached__near_ridge"

def f32bits(x):
    return struct.unpack("<I", struct.pack("<f", x))[0]

class Asm:
    def __init__(self):
        self.lines = []
        self.uid = 0
    def __call__(self, s):
        self.lines.append("    " + s)
    def label(self, l):
        self.lines.append(l + ":")
    def c(self, s):
        self.lines.append("    ; " + s)
    def newlabel(self, p):
        self.uid += 1
        return "L_%s_%d" % (p, self.uid)

def vr(b, n=1):
    return "v%d" % b if n == 1 else "v[%d:%d]" % (b, b + n - 1)

XT = 18432
STAGE1 = 34816
BUF1 = [i * STAGE1 for i in range(4)]
QB = 2 * STAGE1
Q2B = 0
RING = 81920
NSLOT = 5
H_ACC = 28
H_XF = 124
H_WF = 148
H_XA = 212
H_WA = 214
S_VS = 76; S_KS = 77; S_DV = 78; S_DK = 79; S_CP = 80; S_CM = 81; S_SLOTB = 82; S_BASE = 83
WS_PART = 32 << 20
WS_FLAG = 48 << 20
PROF_OFF = 64 << 20
WS_Q2 = 96 << 20
V_LANE = 1
V_AD = 2
V_KA = 2; V_VA = 6
V_T = 14
V_PROF = 21
V_MX = 22
V_ONES = 24
A_O = 28
A_L = 92
A_CI = 100
A_Q = 108
A_K = 140
A_V = 172
A_S = 204
A_P = 236
G_ACC = 28
G_XF = 172
G_WF = 208
L_OFF = 2
S_WAVE = 3
SRD_X = 4
SRD_W = 8
SRD_KV = 12
SRD_O = 20
S_BLK = 24; S_B = 25; S_HEAD = 26; S_ROUND = 27
S_C = 28; S_THR = 29; S_LO = 30; S_ROT = 31
S_PTR = 32
S_WS = 40
S_KOFF = 42
S_KIDX = 43
S_T0 = 44; S_T1 = 45
S_ROWB = 46
S_LDSB = 47
S_KVOFF = 48
S_CNT = 49
S_KVL = 50
S_T2 = 51; S_T3 = 52
S_QROW = 53
S_OUT = 54
S_PTR2 = 56
S_STAMP = 58
S_PROF = 60
SRD_F = 64
SRD_P = 68
S_RET = 72
S_KVB = 74
S_C2 = 92

OPTS = {}
ADBG = ""

def prof_setup(a, base=0):
    if not OPTS.get("prof"): return
    a("s_add_u32 s%d, s%d, %d" % (S_PROF, S_WS, PROF_OFF + base))
    a("s_addc_u32 s%d, s%d, 0" % (S_PROF + 1, S_WS + 1))
    a("s_mov_b32 s%d, %d" % (S_PROF + 2, 256 * 16 * 64 * 4))
    a("s_mov_b32 s%d, 0x20000" % (S_PROF + 3))
    a("s_lshl_b32 s%d, s2, 4" % S_T0)
    a("s_add_u32 s%d, s%d, s%d" % (S_T0, S_T0, S_WAVE))
    a("s_lshl_b32 s%d, s%d, 8" % (S_T0, S_T0))
    a("v_mov_b32 v%d, s%d" % (V_PROF, S_T0))
def prof(a, idx, dyn=None, real=False):
    if not OPTS.get("prof"): return
    a("%s s[%d:%d]" % ("s_memrealtime" if real else "s_memtime", S_STAMP, S_STAMP + 1))
    a("s_waitcnt lgkmcnt(0)")
    a("v_mov_b32 v%d, s%d" % (V_T + 5, S_STAMP))
    if dyn is not None:
        a("s_lshl_b32 s%d, s%d, 6" % (S_STAMP + 1, dyn))
    else:
        a("s_mov_b32 s%d, 0" % (S_STAMP + 1))
    a("s_mov_b64 exec, 1")
    a("buffer_store_dword v%d, v%d, s[%d:%d], s%d offen offset:%d" % (V_T + 5, V_PROF, S_PROF, S_PROF + 3, S_STAMP + 1, idx * 4))
    a("s_mov_b64 exec, -1")

class LgkmTrack:
    def __init__(self): self.order = []
    def issue(self, tag): self.order.append(tag)
    def need(self, tags):
        idx = max(max(i for i, t in enumerate(self.order) if t == tag) for tag in tags)
        return len(self.order) - 1 - idx
    def clear(self): self.order = []

class GemmB:
    NQ = 9
    def __init__(self, NT, NS, bufs):
        self.NT = NT; self.NS = NS; self.bufs = bufs; self.NB = len(bufs)
    def acc(self, nt, j): return G_ACC + (nt * 9 + j) * 4
    def xread(self, j, ss):
        return "ds_read_b128 %s, v%d offset:%d" % (vr(G_XF + j * 4, 4), V_AD + ss, j * 2048)
    def wreads(self, ss):
        return [("ds_read_b64_tr_b16 %s, v%d offset:%d" % (vr(G_WF + (ss * 4 + nt) * 4 + 2 * hh, 2), V_AD + 2 + nt, ss * 8192 + hh * 1024))
                for nt in range(self.NT) for hh in range(2)]
    def group(self, j, ss):
        return ["v_mfma_f32_16x16x32_bf16 %s, %s, %s, %s" % (vr(self.acc(nt, j), 4), vr(G_WF + (ss * 4 + nt) * 4, 4), vr(G_XF + j * 4, 4), vr(self.acc(nt, j), 4))
                for nt in range(self.NT)]
    def issue_next(self, a, lt, j, ss_next):
        a(self.xread(j, ss_next))
        lt.issue(("x", j))
        w = self.wreads(ss_next)
        per = 2
        for k in range(per * j, min(per * j + per, len(w))):
            a(w[k])
            lt.issue(("w", k))
    def first_reads(self, a, lt):
        for j in range(self.NQ):
            self.issue_next(a, lt, j, 0)
    def wait(self, a, lt, tags):
        a("s_waitcnt lgkmcnt(%d)" % min(lt.need(tags), 15))
    def stage(self, a, lt, bi, last):
        wl = ("w", 2 * self.NT - 1)
        for j in range(self.NQ):
            self.wait(a, lt, [("x", j)] + ([wl] if j == 0 else []))
            for m in self.group(j, 0): a(m)
            self.issue_next(a, lt, j, 1)
        for j in range(self.NQ):
            if j == 0:
                self.wait(a, lt, [("x", 0), wl])
            elif last or j <= self.pj:
                self.wait(a, lt, [("x", j)])
            for m in self.group(j, 1): a(m)
            if j == self.pj and not last:
                a("s_waitcnt lgkmcnt(0)")
                lt.clear()
                a("s_barrier")
                d = self.bufs[(bi + 1) % self.NB] - self.bufs[bi]
                for r in range(2 + self.NT):
                    a("v_add_u32 v%d, 0x%x, v%d" % (V_AD + r, d & 0xffffffff, V_AD + r))
                for jj in range(self.pj + 1):
                    self.issue_next(a, lt, jj, 0)
            elif not last and j > self.pj:
                self.issue_next(a, lt, j, 0)
    pj = 0
    def zero_acc(self, a):
        for nt in range(self.NT):
            for j in range(self.NQ):
                for r in range(4):
                    a("v_mov_b32 v%d, 0" % (self.acc(nt, j) + r))
    def main(self, a):
        lt = LgkmTrack()
        self.first_reads(a, lt)
        state0 = list(lt.order)
        NS = self.NS; NB = self.NB
        nloop = (NS - 1) // NB
        loop = a.newlabel("gloop")
        a("s_mov_b32 s%d, 0" % S_CNT)
        a.label(loop)
        for u in range(NB):
            self.stage(a, lt, u, False)
            assert lt.order == state0, (lt.order, state0)
        a("s_add_u32 s%d, s%d, 1" % (S_CNT, S_CNT))
        a("s_cmp_lt_u32 s%d, %d" % (S_CNT, nloop))
        a("s_cbranch_scc1 %s" % loop)
        for s in range(nloop * NB, NS):
            self.stage(a, lt, s % NB, s + 1 == NS)
    def lane_regs(self, a, nt0_sgpr_code, extra_off_code):
        T = V_T
        a("v_lshrrev_b32 v%d, 4, v%d" % (T, V_LANE))
        a("v_and_b32 v%d, 15, v%d" % (T + 1, V_LANE))
        a("v_lshrrev_b32 v%d, 1, v%d" % (T + 2, T + 1))
        a("v_xor_b32 v%d, v%d, v%d" % (T + 2, T + 2, T))
        a("v_lshlrev_b32 v%d, 4, v%d" % (T + 2, T + 2))
        a("v_lshl_add_u32 v%d, v%d, 7, v%d" % (V_AD + 0, T + 1, T + 2))
        a("v_xor_b32 v%d, 64, v%d" % (V_AD + 1, V_AD + 0))
        a("v_lshrrev_b32 v%d, 2, v%d" % (T + 2, T + 1))
        a("v_and_b32 v%d, 1, v%d" % (T + 3, T))
        a("v_lshl_add_u32 v%d, v%d, 2, v%d" % (T + 3, T + 3, T + 2))
        nt0_sgpr_code(a)
        a("v_xor_b32 v%d, s%d, v%d" % (T + 4, S_T0, T + 3))
        a("v_lshlrev_b32 v%d, 5, v%d" % (T + 4, T + 4))
        a("v_lshl_add_u32 v%d, v%d, 11, v%d" % (T + 4, T, T + 4))
        a("v_lshl_add_u32 v%d, v%d, 8, v%d" % (T + 4, T + 2, T + 4))
        a("v_and_b32 v%d, 3, v%d" % (T + 5, T + 1))
        a("v_lshl_add_u32 v%d, v%d, 3, v%d" % (T + 4, T + 5, T + 4))
        extra_off_code(a)
        a("v_add_u32 v%d, s%d, v%d" % (V_AD + 2, S_T1, T + 4))
        for i in range(1, self.NT):
            a("v_xor_b32 v%d, %d, v%d" % (V_AD + 2 + i, 32 * i, V_AD + 2))

class LoadW:
    def __init__(self, NS, WRS, ntf, NP, bufs, off=L_OFF):
        self.NS = NS; self.WRS = WRS; self.ntf = ntf; self.NP = NP; self.bufs = bufs; self.off = off
    def setup(self, a, half_sgpr):
        T = V_T
        a("v_lshrrev_b32 v%d, 4, v%d" % (T, V_LANE))
        a("v_and_b32 v%d, 15, v%d" % (T + 1, V_LANE))
        a("v_lshlrev_b32 v%d, 1, v%d" % (T + 2, T))
        a("v_xor_b32 v%d, v%d, v%d" % (T + 2, T + 2, T + 1))
        a("v_lshlrev_b32 v%d, 4, v%d" % (T + 2, T + 2))
        a("v_mul_u32_u24 v%d, %d, v%d" % (T + 3, self.WRS, T))
        a("v_add_u32 v%d, v%d, v%d" % (self.off, T + 2, T + 3))
        a("v_xor_b32 v%d, 128, v%d" % (self.off + 1, self.off))
        if self.NP == 8:
            a("s_mul_i32 s%d, s%d, %d" % (S_ROWB, half_sgpr, 32 * self.WRS))
            a("s_lshl_b32 s%d, s%d, 13" % (S_LDSB, half_sgpr))
        else:
            a("s_mov_b32 s%d, 0" % S_ROWB)
            a("s_lshl_b32 s%d, s%d, 14" % (S_LDSB, half_sgpr))
    def issue(self, a, bi):
        buf = self.bufs[bi]
        a("s_mul_i32 s%d, s%d, %d" % (S_KOFF, S_KIDX, 64 * self.WRS))
        a("s_add_u32 s%d, s%d, s%d" % (S_KOFF, S_KOFF, S_ROWB))
        for i in range(self.NP):
            a("s_add_u32 m0, s%d, %d" % (S_LDSB, buf + XT + i * 1024))
            a("s_add_u32 s%d, s%d, %d" % (S_T0, S_KOFF, i * 4 * self.WRS))
            a("buffer_load_dwordx4 v%d, s[%d:%d], s%d offen%s lds" % (self.off + ((i >> 1) & 1), SRD_W, SRD_W + 3, S_T0, self.ntf))
        a("s_add_u32 s%d, s%d, 1" % (S_KIDX, S_KIDX))
        a("s_and_b32 s%d, s%d, %d" % (S_KIDX, S_KIDX, self.NS - 1))

class LoadX:
    def __init__(self, NS, XRS, npieces, ntf, bufs):
        self.NS = NS; self.XRS = XRS; self.ntf = ntf; self.NP = npieces; self.bufs = bufs
    def setup(self, a, p0_sgpr):
        T = V_T
        a("v_lshrrev_b32 v%d, 3, v%d" % (T, V_LANE))
        a("v_and_b32 v%d, 7, v%d" % (T + 1, V_LANE))
        a("v_lshrrev_b32 v%d, 1, v%d" % (T + 2, T))
        a("s_lshl_b32 s%d, s%d, 2" % (S_T1, p0_sgpr))
        a("v_add_u32 v%d, s%d, v%d" % (T + 2, S_T1, T + 2))
        a("v_and_b32 v%d, 7, v%d" % (T + 2, T + 2))
        a("v_xor_b32 v%d, v%d, v%d" % (T + 2, T + 2, T + 1))
        a("v_lshlrev_b32 v%d, 4, v%d" % (T + 2, T + 2))
        a("v_mul_u32_u24 v%d, %d, v%d" % (T + 3, self.XRS, T))
        a("v_add_u32 v%d, v%d, v%d" % (L_OFF, T + 2, T + 3))
        a("v_xor_b32 v%d, 64, v%d" % (L_OFF + 1, L_OFF))
        a("s_mul_i32 s%d, s%d, %d" % (S_ROWB, p0_sgpr, 8 * self.XRS))
        a("s_lshl_b32 s%d, s%d, 10" % (S_LDSB, p0_sgpr))
    def issue(self, a, bi):
        buf = self.bufs[bi]
        a("s_lshl_b32 s%d, s%d, 7" % (S_KOFF, S_KIDX))
        a("s_add_u32 s%d, s%d, s%d" % (S_KOFF, S_KOFF, S_ROWB))
        for i in range(self.NP):
            a("s_add_u32 m0, s%d, %d" % (S_LDSB, buf + i * 1024))
            a("s_add_u32 s%d, s%d, %d" % (S_T0, S_KOFF, i * 8 * self.XRS))
            a("buffer_load_dwordx4 v%d, s[%d:%d], s%d offen%s lds" % (L_OFF + (i & 1), SRD_X, SRD_X + 3, S_T0, self.ntf))
        a("s_add_u32 s%d, s%d, 1" % (S_KIDX, S_KIDX))
        a("s_and_b32 s%d, s%d, %d" % (S_KIDX, S_KIDX, self.NS - 1))

class VmTrack:
    def __init__(self): self.order = []
    def issue(self, tag, n): self.order.append((tag, n))
    def need(self, tag):
        idx = max(i for i, (t, n) in enumerate(self.order) if t == tag)
        return min(63, sum(n for (t, n) in self.order[idx + 1:]))

def loader_gemm_line(a, ld, NS, NBUF, vt, extra=None):
    nxt = 0
    def issue_stage():
        nonlocal nxt
        ld.issue(a, nxt % NBUF); vt.issue(("st", nxt), ld.NP); nxt += 1
    while nxt < min(2, NS): issue_stage()
    a("s_waitcnt vmcnt(%d)" % vt.need(("st", 0)))
    a("s_barrier")
    while nxt < min(NBUF, NS): issue_stage()
    for s in range(NS - 1):
        a("s_waitcnt vmcnt(%d)" % vt.need(("st", s + 1)))
        a("s_barrier")
        if nxt < NS and nxt <= s + NBUF: issue_stage()
        if extra and s in extra: extra[s](a, vt)

def kv_lane_regs(a, isv_sgpr):
    T = V_T
    a("v_lshrrev_b32 v%d, 4, v%d" % (T, V_LANE))
    a("v_and_b32 v%d, 15, v%d" % (T + 1, V_LANE))
    a("s_cmp_eq_u32 s%d, 0" % isv_sgpr)
    a("s_cselect_b64 vcc, -1, 0")
    for q in range(4):
        a("v_add_u32 v%d, %d, v%d" % (T + 2, 4 * q, T))
        a("v_and_b32 v%d, 7, v%d" % (T + 3, T + 2))
        a("v_lshlrev_b32 v%d, 1, v%d" % (T + 3, T + 3))
        a("v_cndmask_b32 v%d, v%d, v%d, vcc" % (T + 3, T + 3, T + 2))
        a("v_xor_b32 v%d, v%d, v%d" % (T + 3, T + 3, T + 1))
        a("v_lshlrev_b32 v%d, 4, v%d" % (T + 3, T + 3))
        a("v_lshl_add_u32 v%d, v%d, 8, v%d" % (L_OFF + 2 + q, T, T + 3))

def kv_issue(a, ntf):
    a("s_add_u32 s%d, s%d, s%d" % (S_T1, S_KVL, S_SLOTB))
    for p in range(8):
        a("s_add_u32 m0, s%d, %d" % (S_T1, p * 1024))
        a("s_add_u32 s%d, s%d, %d" % (S_T0, S_KVOFF, p * 1024))
        a("buffer_load_dwordx4 v%d, s[%d:%d], s%d offen%s lds" % (L_OFF + 2 + (p & 3), SRD_KV, SRD_KV + 3, S_T0, ntf))
    a("s_add_u32 s%d, s%d, 8192" % (S_KVOFF, S_KVOFF))
    a("s_add_u32 s%d, s%d, 16384" % (S_SLOTB, S_SLOTB))
    a("s_cmp_eq_u32 s%d, %d" % (S_SLOTB, RING + NSLOT * 16384))
    a("s_cselect_b32 s%d, %d, s%d" % (S_SLOTB, RING, S_SLOTB))

def g2_groups(buf, ntf):
    gs = []
    pre = ["s_mul_i32 s%d, s%d, %d" % (S_KOFF, S_KIDX, 64 * 8192), "s_lshl_b32 s%d, s%d, 7" % (S_ROWB, S_KIDX)]
    for i in range(16):
        gs.append(["s_mov_b32 m0, %d" % (buf + XT + i * 1024),
                   "s_add_u32 s%d, s%d, %d" % (S_T0, S_KOFF, i * 4 * 8192),
                   "buffer_load_dwordx4 v%d, s[%d:%d], s%d offen%s lds" % (L_OFF + 8 + ((i >> 1) & 1), SRD_W, SRD_W + 3, S_T0, ntf)])
    for i in range(18):
        gs.append(["s_mov_b32 m0, %d" % (buf + i * 1024),
                   "s_add_u32 s%d, s%d, %d" % (S_T0, S_ROWB, i * 8 * 2048),
                   "buffer_load_dwordx4 v%d, s[%d:%d], s%d offen%s lds" % (L_OFF + (i & 1), SRD_X, SRD_X + 3, S_T0, ntf)])
    gs[0] = pre + gs[0]
    gs[-1] = gs[-1] + ["s_add_u32 s%d, s%d, 1" % (S_KIDX, S_KIDX), "s_and_b32 s%d, s%d, 15" % (S_KIDX, S_KIDX)]
    return gs

class GemmH:
    def acc(self, j, nt): return H_ACC + (j * 8 + nt) * 4
    def lane_regs(self, a, h_sgpr):
        T = V_T
        a("v_lshrrev_b32 v%d, 4, v%d" % (T, V_LANE))
        a("v_and_b32 v%d, 15, v%d" % (T + 1, V_LANE))
        a("v_lshrrev_b32 v%d, 1, v%d" % (T + 2, T + 1))
        a("v_xor_b32 v%d, v%d, v%d" % (T + 2, T + 2, T))
        a("v_lshlrev_b32 v%d, 4, v%d" % (T + 2, T + 2))
        a("v_lshl_add_u32 v%d, v%d, 7, v%d" % (T + 2, T + 1, T + 2))
        a("s_mul_i32 s%d, s%d, %d" % (S_T0, h_sgpr, 3 * 2048))
        a("v_add_u32 v%d, s%d, v%d" % (H_XA, S_T0, T + 2))
        a("v_xor_b32 v%d, 64, v%d" % (H_XA + 1, H_XA))
        a("v_lshrrev_b32 v%d, 2, v%d" % (T + 2, T + 1))
        a("v_and_b32 v%d, 1, v%d" % (T + 3, T))
        a("v_lshl_add_u32 v%d, v%d, 2, v%d" % (T + 3, T + 3, T + 2))
        a("v_lshlrev_b32 v%d, 5, v%d" % (T + 4, T + 3))
        a("v_lshl_add_u32 v%d, v%d, 11, v%d" % (T + 4, T, T + 4))
        a("v_lshl_add_u32 v%d, v%d, 8, v%d" % (T + 4, T + 2, T + 4))
        a("v_and_b32 v%d, 3, v%d" % (T + 5, T + 1))
        a("v_lshl_add_u32 v%d, v%d, 3, v%d" % (T + 4, T + 5, T + 4))
        a("v_add_u32 v%d, %d, v%d" % (H_WA, XT, T + 4))
        for i in range(1, 8):
            a("v_xor_b32 v%d, %d, v%d" % (H_WA + i, 32 * i, H_WA))
    def zero_acc(self, a):
        for i in range(96): a("v_mov_b32 v%d, 0" % (H_ACC + i))
    def reads(self, buf):
        l = []
        for ss in range(2):
            for j in range(3):
                l.append("ds_read_b128 %s, v%d offset:%d" % (vr(H_XF + (ss * 3 + j) * 4, 4), H_XA + ss, buf + j * 2048))
            for nt in range(8):
                for hh in range(2):
                    l.append("ds_read_b64_tr_b16 %s, v%d offset:%d" % (vr(H_WF + (ss * 8 + nt) * 4 + 2 * hh, 2), H_WA + nt, buf + ss * 8192 + hh * 1024))
        return l
    def mfmas(self, ss):
        return ["v_mfma_f32_16x16x32_bf16 %s, %s, %s, %s" % (vr(self.acc(j, nt), 4), vr(H_WF + (ss * 8 + nt) * 4, 4), vr(H_XF + (ss * 3 + j) * 4, 4), vr(self.acc(j, nt), 4))
                for nt in range(8) for j in range(3)]
    def q_write(self, a, h_sgpr):
        T = V_T
        a("v_lshrrev_b32 v%d, 4, v%d" % (T, V_LANE))
        a("v_and_b32 v%d, 15, v%d" % (T + 1, V_LANE))
        a("v_lshrrev_b32 v%d, 1, v%d" % (T + 2, T))
        a("v_xor_b32 v%d, v%d, v%d" % (T + 2, T + 2, T + 1))
        a("v_lshlrev_b32 v%d, 4, v%d" % (T + 2, T + 2))
        a("v_lshl_add_u32 v%d, v%d, 8, v%d" % (T + 2, T + 1, T + 2))
        a("v_and_b32 v%d, 1, v%d" % (T + 3, T))
        a("v_lshl_add_u32 v%d, v%d, 3, v%d" % (T + 2, T + 3, T + 2))
        a("s_mul_i32 s%d, s%d, %d" % (S_T0, h_sgpr, 3 * 4096))
        a("s_add_u32 s%d, s%d, %d" % (S_T0, S_T0, Q2B))
        a("v_add_u32 v%d, s%d, v%d" % (T + 2, S_T0, T + 2))
        for nt in range(8):
            a("v_xor_b32 v%d, %d, v%d" % (T + 3, 32 * nt, T + 2))
            for j in range(3):
                acc = self.acc(j, nt)
                a("v_pk_mul_f32 %s, %s, s[%d:%d]" % (vr(acc, 2), vr(acc, 2), S_C2, S_C2 + 1))
                a("v_pk_mul_f32 %s, %s, s[%d:%d]" % (vr(acc + 2, 2), vr(acc + 2, 2), S_C2, S_C2 + 1))
                a("v_cvt_pk_bf16_f32 v%d, v%d, v%d" % (acc, acc, acc + 1))
                a("v_cvt_pk_bf16_f32 v%d, v%d, v%d" % (acc + 1, acc + 2, acc + 3))
                a("ds_write_b64 v%d, %s offset:%d" % (T + 3, vr(acc, 2), j * 4096))

def attn_lane_regs(a):
    T = V_T
    a("v_lshrrev_b32 v%d, 4, v%d" % (T, V_LANE))
    a("v_and_b32 v%d, 15, v%d" % (T + 1, V_LANE))
    a("v_xor_b32 v%d, v%d, v%d" % (T + 2, T, T + 1))
    a("v_lshlrev_b32 v%d, 4, v%d" % (T + 2, T + 2))
    a("v_lshl_add_u32 v%d, v%d, 8, v%d" % (T + 2, T + 1, T + 2))
    a("v_add_u32 v%d, s%d, v%d" % (V_KA, S_BASE, T + 2))
    for ks in range(1, 4):
        a("v_xor_b32 v%d, %d, v%d" % (V_KA + ks, ks * 64, V_KA))
    a("v_lshrrev_b32 v%d, 2, v%d" % (T + 2, T + 1))
    a("v_and_b32 v%d, 1, v%d" % (T + 3, T))
    a("v_lshl_add_u32 v%d, v%d, 2, v%d" % (T + 3, T + 3, T + 2))
    a("v_lshlrev_b32 v%d, 5, v%d" % (T + 3, T + 3))
    a("v_lshl_add_u32 v%d, v%d, 10, v%d" % (T + 3, T, T + 3))
    a("v_lshl_add_u32 v%d, v%d, 8, v%d" % (T + 3, T + 2, T + 3))
    a("v_and_b32 v%d, 3, v%d" % (T + 4, T + 1))
    a("v_lshl_add_u32 v%d, v%d, 3, v%d" % (T + 3, T + 4, T + 3))
    a("v_add_u32 v%d, 8192, v%d" % (T + 3, T + 3))
    a("v_add_u32 v%d, s%d, v%d" % (V_VA, S_BASE, T + 3))
    for dt in range(1, 8):
        a("v_xor_b32 v%d, %d, v%d" % (V_VA + dt, dt * 32, V_VA))

def q_write(a, g):
    T = V_T
    a("v_lshrrev_b32 v%d, 4, v%d" % (T, V_LANE))
    a("v_and_b32 v%d, 15, v%d" % (T + 1, V_LANE))
    a("s_lshl_b32 s%d, s%d, 2" % (S_T0, S_WAVE))
    a("v_lshrrev_b32 v%d, 1, v%d" % (T + 2, T))
    a("v_add_u32 v%d, s%d, v%d" % (T + 2, S_T0, T + 2))
    a("v_xor_b32 v%d, v%d, v%d" % (T + 2, T + 2, T + 1))
    a("v_lshlrev_b32 v%d, 4, v%d" % (T + 2, T + 2))
    a("v_lshl_add_u32 v%d, v%d, 8, v%d" % (T + 2, T + 1, T + 2))
    a("v_and_b32 v%d, 1, v%d" % (T + 3, T))
    a("v_lshl_add_u32 v%d, v%d, 3, v%d" % (T + 2, T + 3, T + 2))
    a("v_add_u32 v%d, %d, v%d" % (T + 2, QB, T + 2))
    for nt in range(2):
        a("v_xor_b32 v%d, %d, v%d" % (T + 3, 32 * nt, T + 2))
        for j in range(9):
            acc = g.acc(nt, j)
            a("v_pk_mul_f32 %s, %s, s[%d:%d]" % (vr(acc, 2), vr(acc, 2), S_C2, S_C2 + 1))
            a("v_pk_mul_f32 %s, %s, s[%d:%d]" % (vr(acc + 2, 2), vr(acc + 2, 2), S_C2, S_C2 + 1))
            a("v_cvt_pk_bf16_f32 v%d, v%d, v%d" % (acc, acc, acc + 1))
            a("v_cvt_pk_bf16_f32 v%d, v%d, v%d" % (acc + 1, acc + 2, acc + 3))
            a("ds_write_b64 v%d, %s offset:%d" % (T + 3, vr(acc, 2), j * 4096))

def q_read(a, nq, qbase):
    T = V_T
    a("s_lshl_b32 s%d, s%d, 12" % (S_T3, S_QROW))
    a("s_add_u32 s%d, s%d, %d" % (S_T3, S_T3, qbase))
    a("s_sub_u32 s%d, s%d, s%d" % (S_T3, S_T3, S_BASE))
    for ks in range(4):
        a("v_add_u32 v%d, s%d, v%d" % (T + ks, S_T3, V_KA + ks))
    for j in range(nq):
        for ks in range(4):
            a("ds_read_b128 %s, v%d offset:%d" % (vr(A_Q + (j * 4 + ks) * 4, 4), T + ks, j * 4096))

def k_reads():
    return ["ds_read_b128 %s, v%d offset:%d" % (vr(A_K + (t * 4 + ks) * 4, 4), V_KA + ks, t * 4096) for ks in range(4) for t in range(2)]
def adv(regs, n, s_slot, s_delta):
    l = ["s_cmp_eq_u32 s%d, %d" % (s_slot, NSLOT - 1),
         "s_cselect_b32 s%d, s%d, s%d" % (s_delta, S_CM, S_CP),
         "s_add_u32 s%d, s%d, 1" % (s_slot, s_slot),
         "s_cmp_eq_u32 s%d, %d" % (s_slot, NSLOT),
         "s_cselect_b32 s%d, 0, s%d" % (s_slot, s_slot)]
    l += ["v_add_u32 v%d, s%d, v%d" % (regs + i, s_delta, regs + i) for i in range(n)]
    return l
def v_reads():
    return ["ds_read_b64_tr_b16 %s, v%d offset:%d" % (vr(A_V + dt * 4 + 2 * hh, 2), V_VA + dt, hh * 4096) for dt in range(8) for hh in range(2)]
def S_reg(sb, j, t): return A_S + sb * 16 + (j * 2 + t) * 4
def qk_mfmas(nq, sb):
    l = []
    for ks in range(4):
        for t in range(2):
            for j in range(nq):
                s = vr(S_reg(sb, j, t), 4)
                l.append("v_mfma_f32_16x16x32_bf16 %s, %s, %s, %s" % (s, vr(A_K + (t * 4 + ks) * 4, 4), vr(A_Q + (j * 4 + ks) * 4, 4), vr(A_CI + j * 4, 4) if ks == 0 else s))
    return l
def pv_mfmas(nq):
    l = []
    for dt in range(8):
        for j in range(nq):
            o = vr(A_O + (j * 8 + dt) * 4, 4)
            l.append("v_mfma_f32_16x16x32_bf16 %s, %s, %s, %s" % (o, vr(A_V + dt * 4, 4), vr(A_P + j * 4, 4), o))
        if dt == 3:
            for j in range(nq):
                l.append("v_mfma_f32_16x16x32_bf16 %s, %s, %s, %s" % (vr(A_L + j * 4, 4), vr(V_ONES, 4), vr(A_P + j * 4, 4), vr(A_L + j * 4, 4)))
    return l
def toggle(regs, n, delta):
    return ["v_add_u32 v%d, 0x%x, v%d" % (regs + i, delta & 0xffffffff, regs + i) for i in range(n)]
def max_ops(nq, sb):
    l = []
    for j in range(nq):
        S = S_reg(sb, j, 0); m = V_MX + j
        l += ["v_max3_f32 v%d, v%d, v%d, v%d" % (m, S, S + 1, S + 2),
              "v_max3_f32 v%d, v%d, v%d, v%d" % (m, m, S + 3, S + 4),
              "v_max3_f32 v%d, v%d, v%d, v%d" % (m, m, S + 5, S + 6),
              "v_max_f32 v%d, v%d, v%d" % (m, m, S + 7)]
    if nq == 2:
        l = [l[0], l[4], l[1], l[5], l[2], l[6], l[3], l[7]]
        l.append("v_max_f32 v%d, v%d, v%d" % (V_T, V_MX, V_MX + 1))
        l.append("v_cmp_lt_f32 vcc, s%d, v%d" % (S_THR, V_T))
    else:
        l.append("v_cmp_lt_f32 vcc, s%d, v%d" % (S_THR, V_MX))
    return l

def spread(a, ms, fill):
    n = len(ms); k = 0
    for i, m in enumerate(ms):
        a(m)
        want = ((i + 1) * len(fill) + n - 1) // n
        while k < min(want, len(fill)):
            a(fill[k]); k += 1
    while k < len(fill):
        a(fill[k]); k += 1

def attn_step(a, nq, u, stubs):
    sb = u & 1
    a.c("======== attn step u=%d nq=%d" % (u, nq))
    a("s_waitcnt lgkmcnt(0)")
    if "fine" in ADBG:
        a("s_sub_u32 s96, s86, s84"); a("s_add_u32 s94, s94, s96")
        a("s_sub_u32 s96, s88, s86"); a("s_add_u32 s95, s95, s96")
        a("s_mov_b32 s97, s88")
        a("s_memtime s[84:85]")
    vl = v_reads()
    ex = []
    for j in range(nq):
        S = S_reg(sb, j, 0)
        for i in range(8):
            ex.append("v_exp_f32 v%d, v%d" % (S + i, S + i))
    cv = []
    for j in range(nq):
        S = S_reg(sb, j, 0)
        for i in range(4):
            cv.append("v_cvt_pk_bf16_f32 v%d, v%d, v%d" % (A_P + j * 4 + i, S + 2 * i, S + 2 * i + 1))
    fill = []
    vi = 0
    for i in range(len(ex)):
        fill.append(ex[i])
        nv = (len(vl) * (i + 1) + len(ex) - 1) // len(ex)
        while vi < min(nv, len(vl)):
            fill.append(vl[vi]); vi += 1
        if i % 2 == 1 and i >= 3:
            fill.append(cv[(i - 3) // 2])
    fill.append("s_nop 0")
    fill.append(cv[-1])
    spread(a, qk_mfmas(nq, sb ^ 1), fill)
    if "fine" in ADBG:
        a("s_memtime s[86:87]")
    a("s_waitcnt lgkmcnt(0)")
    if "fine" in ADBG:
        a("s_sub_u32 s96, s84, s97"); a("s_add_u32 s98, s98, s96")
    a("s_barrier")
    if "fine" in ADBG:
        a("s_memtime s[88:89]")
    if u == 1:
        a("s_cmp_eq_u32 s%d, 15" % S_CNT)
        a("s_cselect_b32 s%d, 0x7f800000, s%d" % (S_THR, S_THR))
    kr = k_reads()
    mx = max_ops(nq, sb ^ 1)
    pv = pv_mfmas(nq)
    post = adv(V_VA, 8, S_VS, S_DV) + adv(V_KA, 4, S_KS, S_DK)
    n = len(pv)
    fill = kr + post + mx[:-1]
    spread(a, pv, fill)
    a(mx[-1])
    rare = a.newlabel("rare"); back = a.newlabel("back")
    a("s_cbranch_vccnz %s" % rare)
    a.label(back)
    stubs.append((rare, back, sb ^ 1))

def attn_rare_sub(a, nq, sb, label):
    a.label(label)
    T = V_T
    a("s_nop 7")
    for j in range(nq):
        S = S_reg(sb, j, 0); m = V_MX + j
        a("v_xor_b32 v%d, 16, v%d" % (T + 1, V_LANE))
        a("v_lshlrev_b32 v%d, 2, v%d" % (T + 1, T + 1))
        a("ds_bpermute_b32 v%d, v%d, v%d" % (T, T + 1, m))
        a("s_waitcnt lgkmcnt(0)")
        a("v_max_f32 v%d, v%d, v%d" % (m, m, T))
        a("v_xor_b32 v%d, 32, v%d" % (T + 1, V_LANE))
        a("v_lshlrev_b32 v%d, 2, v%d" % (T + 1, T + 1))
        a("ds_bpermute_b32 v%d, v%d, v%d" % (T, T + 1, m))
        a("s_waitcnt lgkmcnt(0)")
        a("v_max_f32 v%d, v%d, v%d" % (m, m, T))
        a("v_cmp_lt_f32 vcc, s%d, v%d" % (S_LO, m))
        a("s_nop 1")
        a("v_cndmask_b32 v%d, 0, v%d, vcc" % (m, m))
        for i in range(8):
            a("v_sub_f32 v%d, v%d, v%d" % (S + i, S + i, m))
        for i in range(4):
            a("v_sub_f32 v%d, v%d, v%d" % (A_CI + j * 4 + i, A_CI + j * 4 + i, m))
        a("v_max_f32 v%d, 0, v%d" % (T, m))
        a("v_sub_f32 v%d, 0, v%d" % (T, T))
        a("v_exp_f32 v%d, v%d" % (T, T))
        a("s_nop 0")
        for i in range(4):
            a("v_mul_f32 v%d, v%d, v%d" % (A_L + j * 4 + i, A_L + j * 4 + i, T))
        for i in range(32):
            a("v_mul_f32 v%d, v%d, v%d" % (A_O + j * 32 + i, A_O + j * 32 + i, T))
    if "fine" in ADBG: a("s_add_u32 s90, s90, 32")
    a("s_mov_b32 s%d, 0x%08x" % (S_THR, f32bits(8.0)))
    a("s_mov_b32 s%d, s%d" % (S_LO, S_THR))
    a("s_nop 1")
    a("s_setpc_b64 s[%d:%d]" % (S_RET, S_RET + 1))

def attn_epilogue(a, nq, stf):
    T = V_T
    a("v_lshrrev_b32 v%d, 4, v%d" % (T, V_LANE))
    a("v_and_b32 v%d, 15, v%d" % (T + 1, V_LANE))
    a("v_and_b32 v%d, 1, v%d" % (T + 2, T))
    a("v_lshlrev_b32 v%d, 5, v%d" % (T + 2, T + 2))
    a("v_lshrrev_b32 v%d, 1, v%d" % (T, T))
    a("v_lshl_add_u32 v%d, v%d, 4, v%d" % (T + 2, T, T + 2))
    a("v_lshl_add_u32 v%d, v%d, 13, v%d" % (T + 1, T + 1, T + 2))
    a("s_mul_i32 s%d, s%d, %d" % (S_T0, S_QROW, 16 * 8192))
    for j in range(nq):
        a("v_rcp_f32 v%d, v%d" % (V_MX + j, A_L + j * 4))
    a("s_nop 0")
    for j in range(nq):
        if j == 1:
            a("s_add_u32 s%d, s%d, %d" % (S_T0, S_T0, 16 * 8192))
        for dp in range(4):
            o = A_O + (j * 8 + 2 * dp) * 4
            for r in range(8):
                a("v_mul_f32 v%d, v%d, v%d" % (o + r, o + r, V_MX + j))
            a("v_cvt_pk_bf16_f32 v%d, v%d, v%d" % (o, o, o + 1))
            a("v_cvt_pk_bf16_f32 v%d, v%d, v%d" % (o + 1, o + 2, o + 3))
            a("v_cvt_pk_bf16_f32 v%d, v%d, v%d" % (o + 2, o + 4, o + 5))
            a("v_cvt_pk_bf16_f32 v%d, v%d, v%d" % (o + 3, o + 6, o + 7))
            a("s_nop 1")
            a("v_permlane16_swap_b32 v%d, v%d" % (o, o + 2))
            a("v_permlane16_swap_b32 v%d, v%d" % (o + 1, o + 3))
            a("buffer_store_dwordx4 %s, v%d, s[%d:%d], s%d offen offset:%d%s" % (vr(o, 4), T + 1, SRD_O, SRD_O + 3, S_T0, dp * 64, stf))

def srd_w(a):
    a("s_lshl_b32 s%d, s%d, 8" % (S_T0, S_HEAD))
    a("s_add_u32 s%d, s%d, s%d" % (SRD_W, S_PTR + 6, S_T0))
    a("s_addc_u32 s%d, s%d, 0" % (SRD_W + 1, S_PTR + 7))
    a("s_sub_u32 s%d, 8388608, s%d" % (SRD_W + 2, S_T0))
    a("s_mov_b32 s%d, 0x20000" % (SRD_W + 3))
def srd_kv(a):
    a("s_lshl_b32 s%d, s%d, 5" % (S_T0, S_B))
    a("s_add_u32 s%d, s%d, s%d" % (S_T0, S_T0, S_HEAD))
    a("s_lshl_b32 s%d, s%d, 18" % (S_T0, S_T0))
    a("s_add_u32 s%d, s%d, s%d" % (SRD_KV, S_KVB, S_T0))
    a("s_addc_u32 s%d, s%d, 0" % (SRD_KV + 1, S_KVB + 1))
    a("s_mov_b32 s%d, 262144" % (SRD_KV + 2))
    a("s_mov_b32 s%d, 0x20000" % (SRD_KV + 3))
def srd_o(a):
    a("s_mul_i32 s%d, s%d, %d" % (S_T0, S_BLK, 1152 * 8192))
    a("s_mul_i32 s%d, s%d, %d" % (S_T1, S_B, 144 * 8192))
    a("s_add_u32 s%d, s%d, s%d" % (S_T0, S_T0, S_T1))
    a("s_lshl_b32 s%d, s%d, 8" % (S_T1, S_HEAD))
    a("s_add_u32 s%d, s%d, s%d" % (S_T0, S_T0, S_T1))
    a("s_add_u32 s%d, s%d, s%d" % (SRD_O, S_WS, S_T0))
    a("s_addc_u32 s%d, s%d, 0" % (SRD_O + 1, S_WS + 1))
    a("s_mov_b32 s%d, %d" % (SRD_O + 2, 143 * 8192 + 256))
    a("s_mov_b32 s%d, 0x20000" % (SRD_O + 3))

def entry_common(a, done):
    a("s_cmp_ge_u32 s2, 256")
    a("s_cbranch_scc1 %s" % done)
    a("v_and_b32 v%d, 63, v0" % V_LANE)
    a("v_lshrrev_b32 v%d, 6, v0" % V_T)
    a("s_nop 0")
    a("v_readfirstlane_b32 s%d, v%d" % (S_WAVE, V_T))

def head_base(a):
    a("s_cmp_eq_u32 s%d, 0" % S_ROUND)
    a("s_cselect_b32 s%d, 2, 4" % S_VS)
    a("s_lshl_b32 s%d, s%d, 14" % (S_BASE, S_VS))
    a("s_add_u32 s%d, s%d, %d" % (S_BASE, S_BASE, RING))
    a("s_mov_b32 s%d, s%d" % (S_KS, S_VS))

def attention_heads(a, nq, tagc, stf):
    hl = "L_k1_head%s" % tagc
    a.label(hl)
    for r in k_reads(): a(r)
    for i in adv(V_KA, 4, S_KS, S_DK): a(i)
    srd_o(a)
    a("s_add_u32 s%d, s%d, 4" % (S_HEAD, S_HEAD))
    for j in range(nq):
        for i in range(32):
            a("v_mov_b32 v%d, 0" % (A_O + j * 32 + i))
        for i in range(4):
            a("v_mov_b32 v%d, 0" % (A_L + j * 4 + i))
            a("v_mov_b32 v%d, 0" % (A_CI + j * 4 + i))
    a("s_mov_b32 s%d, 0xff800000" % S_THR)
    a("s_mov_b32 s%d, 0xff800000" % S_LO)
    a("s_waitcnt lgkmcnt(0)")
    for m in qk_mfmas(nq, 0): a(m)
    for r in k_reads(): a(r)
    for i in adv(V_KA, 4, S_KS, S_DK): a(i)
    a("s_nop 3")
    for m in max_ops(nq, 0): a(m)
    subs = ["L_k1_rsub%s_%d" % (tagc, sb) for sb in range(2)]
    a("s_call_b64 s[%d:%d], %s" % (S_RET, S_RET + 1, subs[0]))
    prof(a, 2, S_ROUND)
    if "fine" in ADBG:
        for r in (94, 95, 98): a("s_mov_b32 s%d, 0" % r)
        a("s_memtime s[84:85]"); a("s_memtime s[86:87]"); a("s_memtime s[88:89]")
    stubs = []
    loop = a.newlabel("attn_loop")
    a("s_mov_b32 s%d, 0" % S_CNT)
    a.label(loop)
    for u in range(2):
        attn_step(a, nq, u, stubs)
    a("s_add_u32 s%d, s%d, 1" % (S_CNT, S_CNT))
    a("s_cmp_lt_u32 s%d, 16" % S_CNT)
    a("s_cbranch_scc1 %s" % loop)
    prof(a, 3, S_ROUND)
    if "fine" in ADBG:
        for k, r in enumerate((94, 95, 98, 98)):
            a("v_mov_b32 v%d, s%d" % (V_T + 5, r))
            a("s_lshl_b32 s%d, s%d, 6" % (S_STAMP + 1, S_ROUND))
            a("s_mov_b64 exec, 1")
            a("buffer_store_dword v%d, v%d, s[%d:%d], s%d offen offset:%d" % (V_T + 5, V_PROF, S_PROF, S_PROF + 3, S_STAMP + 1, (10 + k) * 4))
            a("s_mov_b64 exec, -1")
    attn_epilogue(a, nq, stf)
    prof(a, 4, S_ROUND)
    prof(a, 5, S_ROUND, True)
    a("s_add_u32 s%d, s%d, 1" % (S_ROUND, S_ROUND))
    a("s_cmp_lt_u32 s%d, 2" % S_ROUND)
    fin = a.newlabel("fin")
    a("s_cbranch_scc0 %s" % fin)
    head_base(a)
    attn_lane_regs(a)
    a("s_waitcnt lgkmcnt(0)")
    a("s_barrier")
    q_read(a, nq, Q2B)
    a("s_branch %s" % hl)
    a.label(fin)
    a("s_endpgm")
    for (r, b, sb) in stubs:
        a.label(r)
        a("s_call_b64 s[%d:%d], %s" % (S_RET, S_RET + 1, subs[sb]))
        a("s_branch %s" % b)
    for sb in range(2):
        attn_rare_sub(a, nq, sb, subs[sb])

def kernel_k1(a, name):
    global ADBG
    opts = OPTS
    ADBG = opts.get("adbg", "")
    ntx = opts.get("nt_xw", "")
    ntkv = opts.get("nt_kv", " nt")
    stf = opts.get("st_o", " sc1")
    D = NSLOT
    a.lines.append(".p2align 8")
    a.lines.append(".type %s,@function" % name)
    a.label(name)
    done = "L_k1_done"
    entry_common(a, done)
    a("s_and_b32 s%d, s2, 7" % S_T0)
    a("s_lshr_b32 s%d, s2, 3" % S_T1)
    a("s_lshr_b32 s%d, s%d, 2" % (S_BLK, S_T0))
    a("s_and_b32 s%d, s%d, 3" % (S_T2, S_T0))
    a("s_and_b32 s%d, s%d, 7" % (S_B, S_T1))
    a("s_lshr_b32 s%d, s%d, 3" % (S_T3, S_T1))
    a("s_lshl_b32 s%d, s%d, 3" % (S_HEAD, S_T2))
    a("s_add_u32 s%d, s%d, s%d" % (S_HEAD, S_HEAD, S_T3))
    r1 = opts.get("rot1", "0")
    if r1 == "full":
        a("s_lshl_b32 s%d, s%d, 1" % (S_ROT, S_B))
        a("s_lshl_b32 s%d, s%d, 2" % (S_T3, S_T3))
        a("s_add_u32 s%d, s%d, s%d" % (S_ROT, S_ROT, S_T3))
        a("s_and_b32 s%d, s%d, 15" % (S_ROT, S_ROT))
    elif r1 == "0":
        a("s_mov_b32 s%d, 0" % S_ROT)
    elif r1 == "b":
        a("s_mov_b32 s%d, s%d" % (S_ROT, S_B))
    a("s_mul_i32 s%d, s%d, 40" % (S_T0, S_BLK))
    a("s_add_u32 s%d, s0, s%d" % (S_PTR2, S_T0))
    a("s_addc_u32 s%d, s1, 0" % (S_PTR2 + 1))
    a("s_load_dwordx8 s[%d:%d], s[%d:%d], 0" % (S_PTR, S_PTR + 7, S_PTR2, S_PTR2 + 1))
    a("s_load_dwordx2 s[%d:%d], s[0:1], 96" % (S_WS, S_WS + 1))
    a("s_mov_b32 s%d, 0x%08x" % (S_C2, f32bits(128 ** -0.5 * 1.4426950408889634)))
    a("s_mov_b32 s%d, s%d" % (S_C2 + 1, S_C2))
    a("s_mov_b32 s%d, 0" % S_ROUND)
    a("s_waitcnt lgkmcnt(0)")
    prof_setup(a)
    prof(a, 8, None, True)
    prof(a, 9)
    a("s_cmp_ge_u32 s%d, 5" % S_WAVE)
    a("s_cbranch_scc0 L_k1_compute")
    a("s_setprio %s" % opts.get("lprio", "1"))
    a("s_sub_u32 s%d, s%d, 5" % (S_T2, S_WAVE))
    a("s_mov_b32 s%d, s%d" % (S_QROW, S_T2))
    a("s_mov_b32 s%d, s%d" % (S_KIDX, S_ROT))
    a("s_cmp_eq_u32 s%d, 7" % S_WAVE)
    a("s_cbranch_scc1 L_k1_lb")
    gh = GemmH()
    for which in ("A", "B"):
        vt = VmTrack()
        extra = {}
        if which == "A":
            ld = LoadW(16, 8192, ntx, 8, BUF1[:3])
            srd_w(a)
            ld.setup(a, S_T2)
            a("s_cmp_eq_u32 s%d, 0" % S_T2)
            a("s_cselect_b32 s%d, s%d, s%d" % (S_KVB, S_PTR + 2, S_PTR + 4))
            a("s_cselect_b32 s%d, s%d, s%d" % (S_KVB + 1, S_PTR + 3, S_PTR + 5))
            a("s_lshl_b32 s%d, s%d, 13" % (S_KVL, S_T2))
            srd_kv(a)
            kv_lane_regs(a, S_T2)
            a("s_mov_b32 s%d, 0" % S_KVOFF)
            a("s_mov_b32 s%d, %d" % (S_SLOTB, RING + 2 * 16384))
            pts = [int(x) for x in opts.get("kvpts", "2,5,8").split(",")]
            def kvx(n):
                def f(a, vt):
                    kv_issue(a, ntkv); vt.issue(("blk", n), 8)
                return f
            for n in range(3): extra[pts[n]] = kvx(n)
        else:
            a.label("L_k1_lb")
            ld = LoadX(16, 2048, 18, ntx, BUF1[:3])
            a("s_mul_i32 s%d, s%d, 294912" % (S_T0, S_B))
            a("s_add_u32 s%d, s%d, s%d" % (SRD_X, S_PTR, S_T0))
            a("s_addc_u32 s%d, s%d, 0" % (SRD_X + 1, S_PTR + 1))
            a("s_mov_b32 s%d, 294912" % (SRD_X + 2))
            a("s_mov_b32 s%d, 0x20000" % (SRD_X + 3))
            a("s_mov_b32 s%d, 0" % S_T2)
            ld.setup(a, S_T2)
            def misc(a, vt):
                lw2 = LoadW(16, 8192, ntx, 16, BUF1[:3], L_OFF + 8)
                a("s_mov_b32 s%d, 0" % S_T2)
                a("s_mov_b32 s%d, s%d" % (S_KVOFF, S_ROWB))
                lw2.setup(a, S_T2)
                a("s_mov_b32 s%d, s%d" % (S_ROWB, S_KVOFF))
                a("s_mov_b32 s%d, 0" % S_LDSB)
                a("s_add_u32 s%d, s%d, 4" % (S_HEAD, S_HEAD))
                srd_w(a)
                a("s_add_u32 s%d, s%d, %d" % (SRD_F, S_WS, WS_FLAG))
                a("s_addc_u32 s%d, s%d, 0" % (SRD_F + 1, S_WS + 1))
                a("s_mov_b32 s%d, 4096" % (SRD_F + 2))
                a("s_mov_b32 s%d, 0x20000" % (SRD_F + 3))
                a("s_lshl_b32 s%d, s2, 4" % S_T0)
                a("v_lshlrev_b32 v%d, 2, v%d" % (V_T, V_LANE))
                a("v_mov_b32 v%d, 0" % (V_T + 1))
                a("s_mov_b64 exec, 15")
                a("buffer_store_dword v%d, v%d, s[%d:%d], s%d offen" % (V_T + 1, V_T, SRD_F, SRD_F + 3, S_T0))
                a("s_mov_b64 exec, -1")
                vt.issue(("z", 0), 1)
                a("s_lshr_b32 s%d, s2, 7" % S_T0)
                a("s_mul_i32 s%d, s%d, 40" % (S_T0, S_T0))
                a("s_add_u32 s%d, s0, s%d" % (S_PTR2, S_T0))
                a("s_addc_u32 s%d, s1, 0" % (S_PTR2 + 1))
                a("s_load_dwordx2 s[%d:%d], s[%d:%d], 32" % (S_KVB, S_KVB + 1, S_PTR2, S_PTR2 + 1))
                a("s_and_b32 s%d, s2, 127" % S_T0)
                a("s_lshl_b32 s%d, s%d, 16" % (S_T0, S_T0))
                a("v_lshlrev_b32 v%d, 6, v%d" % (L_OFF + 6, V_LANE))
                a("s_waitcnt lgkmcnt(0)")
                a("s_add_u32 s%d, s%d, s%d" % (SRD_P, S_KVB, S_T0))
                a("s_addc_u32 s%d, s%d, 0" % (SRD_P + 1, S_KVB + 1))
                a("s_mov_b32 s%d, 65536" % (SRD_P + 2))
                a("s_mov_b32 s%d, 0x20000" % (SRD_P + 3))
            extra[4] = misc
            def g2s0(a, vt):
                a("s_mov_b32 s%d, s%d" % (S_KIDX, S_ROT))
                for g in g2_groups(BUF1[1], ntx):
                    for ins in g: a(ins)
                vt.issue(("g2", 0), 34)
            extra[13] = g2s0
        def ginit(a, vt):
            gh.lane_regs(a, S_QROW)
            gh.zero_acc(a)
        extra[0] = ginit
        prof(a, 6)
        loader_gemm_line(a, ld, 16, 3, vt, extra)
        a("s_barrier")
        if which == "A":
            a("s_waitcnt vmcnt(%d)" % vt.need(("blk", 1)))
        else:
            for g in g2_groups(BUF1[0], ntx):
                for ins in g: a(ins)
            vt.issue(("g2", 1), 34)
            a("s_waitcnt vmcnt(%d)" % vt.need(("g2", 0)))
        a("s_barrier")
        if which == "A":
            kv_issue(a, ntkv); kv_issue(a, ntkv)
        def interval(n, last_it):
            m = n // 2
            dma = []
            if n % 2 == 0:
                rd = gh.reads(BUF1[(m + 1) % 2])
                for r in rd: a(r)
                a("s_waitcnt lgkmcnt(15)")
                for mm in gh.mfmas(0): a(mm)
                a("s_waitcnt lgkmcnt(0)")
            else:
                ms = gh.mfmas(1)
                if which == "B" and not last_it:
                    gs = g2_groups(BUF1[(m + 1) % 2], ntx)
                    k = 0
                    for i, mm in enumerate(ms):
                        a(mm)
                        want = ((i + 1) * len(gs) + len(ms) - 1) // len(ms)
                        while k < min(want, len(gs)):
                            for ins in gs[k]: a(ins)
                            k += 1
                else:
                    for mm in ms: a(mm)
            if which == "A":
                a("s_waitcnt vmcnt(16)")
            elif n % 2 == 1:
                if not last_it: a("s_waitcnt vmcnt(34)")
                elif m == 14: a("s_waitcnt vmcnt(0)")
            a("s_barrier")
            if which == "A":
                if (n % 4 == 3) and not last_it:
                    sk = a.newlabel("sk")
                    a("s_cmp_eq_u32 s%d, 6" % S_CNT)
                    a("s_cbranch_scc0 %s" % sk)
                    a("s_add_u32 s%d, s%d, 4" % (S_HEAD, S_HEAD))
                    srd_kv(a)
                    a("s_mov_b32 s%d, 0" % S_KVOFF)
                    a.label(sk)
                kv_issue(a, ntkv)
        loop = a.newlabel("h1loop")
        a("s_mov_b32 s%d, 0" % S_CNT)
        a.label(loop)
        for u in range(4): interval(u, False)
        a("s_add_u32 s%d, s%d, 1" % (S_CNT, S_CNT))
        a("s_cmp_lt_u32 s%d, 7" % S_CNT)
        a("s_cbranch_scc1 %s" % loop)
        for u in range(4): interval(28 + u, True)
        a("s_nop 7")
        gh.q_write(a, S_QROW)
        a("s_waitcnt lgkmcnt(0)")
        a("s_barrier")
        loop = a.newlabel("h2loop")
        a("s_mov_b32 s%d, 0" % S_CNT)
        a.label(loop)
        if which == "A":
            a("s_waitcnt vmcnt(16)")
        a("s_barrier")
        if which == "A":
            kv_issue(a, ntkv)
        a("s_add_u32 s%d, s%d, 1" % (S_CNT, S_CNT))
        a("s_cmp_lt_u32 s%d, 27" % S_CNT)
        a("s_cbranch_scc1 %s" % loop)
        for n in range(59, 64):
            if which == "A" and n + 2 <= 63:
                a("s_waitcnt vmcnt(%d)" % ((63 - (n + 2)) * 8))
            a("s_barrier")
            if which == "B" and n == 59 and opts.get("wopf", "1") == "1":
                for i in range(16):
                    a("s_mov_b32 s%d, %d" % (S_T0, i * 4096))
                    a("buffer_load_dword v%d, v%d, s[%d:%d], s%d offen" % (L_OFF + 7, L_OFF + 6, SRD_P, SRD_P + 3, S_T0))
        a("s_endpgm")
    a.label("L_k1_compute")
    a("s_mov_b32 s%d, 0x3f803f80" % S_T0)
    for i in range(4):
        a("v_mov_b32 v%d, s%d" % (V_ONES + i, S_T0))
    a("s_mov_b32 s%d, 16384" % S_CP)
    a("s_mov_b32 s%d, 0x%x" % (S_CM, (-(NSLOT - 1) * 16384) & 0xffffffff))
    a("s_lshl_b32 s%d, s%d, 1" % (S_QROW, S_WAVE))
    prof(a, 0)
    a("s_cmp_eq_u32 s%d, 4" % S_WAVE)
    a("s_cbranch_scc1 L_k1_w4")
    g = GemmB(2, 16, BUF1[:3])
    def nt0(a):
        a("s_lshl_b32 s%d, s%d, 1" % (S_T0, S_WAVE))
    def ex(a):
        a("s_mov_b32 s%d, %d" % (S_T1, XT))
    g.lane_regs(a, nt0, ex)
    g.zero_acc(a)
    a("s_barrier")
    prof(a, 6)
    g.main(a)
    prof(a, 1)
    a("s_nop 4")
    q_write(a, g)
    for nq, tagc in ((2, "B"), (1, "S")):
        if nq == 1:
            a.label("L_k1_w4")
            for s in range(16):
                a("s_barrier")
            prof(a, 1)
        head_base(a)
        attn_lane_regs(a)
        a("s_waitcnt lgkmcnt(0)")
        a("s_barrier")
        q_read(a, nq, QB)
        a("s_waitcnt lgkmcnt(0)")
        a("s_barrier")
        attention_heads(a, nq, tagc, stf)
    a.label(done)
    a("s_endpgm")

def kernel_k2(a, name):
    opts = OPTS
    XSC = " sc1" if opts.get("xsc", "1") == "1" else " sc0 sc1"
    ntx = opts.get("nt_o", "")
    a.lines.append(".p2align 8")
    a.lines.append(".type %s,@function" % name)
    a.label(name)
    done = "L_k2_done"
    S_S = S_ROUND
    entry_common(a, done)
    a("s_and_b32 s%d, s2, 7" % S_T0)
    a("s_lshr_b32 s%d, s2, 3" % S_T1)
    a("s_lshr_b32 s%d, s%d, 2" % (S_BLK, S_T0))
    a("s_lshr_b32 s%d, s%d, 1" % (S_S, S_T0))
    a("s_and_b32 s%d, s%d, 1" % (S_S, S_S))
    a("s_and_b32 s%d, s%d, 1" % (S_T2, S_T0))
    a("s_lshl_b32 s%d, s%d, 2" % (S_T2, S_T2))
    a("s_and_b32 s%d, s%d, 3" % (S_B, S_T1))
    a("s_add_u32 s%d, s%d, s%d" % (S_B, S_B, S_T2))
    a("s_lshr_b32 s%d, s%d, 2" % (S_HEAD, S_T1))
    r2 = opts.get("rot2", "0")
    if r2 == "0":
        a("s_mov_b32 s%d, 0" % S_ROT)
    elif r2 == "j":
        a("s_mov_b32 s%d, s%d" % (S_ROT, S_HEAD))
    a("s_mul_i32 s%d, s%d, 40" % (S_T0, S_BLK))
    a("s_add_u32 s%d, s0, s%d" % (S_PTR2, S_T0))
    a("s_addc_u32 s%d, s1, 0" % (S_PTR2 + 1))
    a("s_load_dwordx2 s[%d:%d], s[%d:%d], 32" % (S_PTR, S_PTR + 1, S_PTR2, S_PTR2 + 1))
    a("s_load_dwordx2 s[%d:%d], s[0:1], 96" % (S_WS, S_WS + 1))
    a("s_load_dwordx2 s[%d:%d], s[0:1], 80" % (S_OUT, S_OUT + 1))
    a("s_waitcnt lgkmcnt(0)")
    prof_setup(a, 256 * 16 * 64 * 4)
    prof(a, 0)
    prof(a, 8, None, True)
    a("s_cmp_ge_u32 s%d, 4" % S_WAVE)
    a("s_cbranch_scc1 L_k2_loader")
    g = GemmB(2, 32, BUF1)
    def nt0(a):
        a("s_lshl_b32 s%d, s%d, 1" % (S_T0, S_WAVE))
    def ex(a):
        a("s_mov_b32 s%d, %d" % (S_T1, XT))
    g.lane_regs(a, nt0, ex)
    a("s_mul_i32 s%d, s%d, %d" % (S_T0, S_B, 144 * 4096))
    a("s_lshl_b32 s%d, s%d, 11" % (S_T1, S_BLK))
    a("s_add_u32 s%d, s%d, s%d" % (S_T0, S_T0, S_T1))
    a("s_lshl_b32 s%d, s%d, 8" % (S_T1, S_HEAD))
    a("s_add_u32 s%d, s%d, s%d" % (S_T0, S_T0, S_T1))
    a("s_add_u32 s%d, s%d, s%d" % (SRD_O, S_OUT, S_T0))
    a("s_addc_u32 s%d, s%d, 0" % (SRD_O + 1, S_OUT + 1))
    a("s_mov_b32 s%d, %d" % (SRD_O + 2, 143 * 4096 + 256))
    a("s_mov_b32 s%d, 0x20000" % (SRD_O + 3))
    a("s_lshl_b32 s%d, s%d, 3" % (S_T2, S_BLK))
    a("s_add_u32 s%d, s%d, s%d" % (S_T2, S_T2, S_B))
    a("s_lshl_b32 s%d, s%d, 3" % (S_T2, S_T2))
    a("s_add_u32 s%d, s%d, s%d" % (S_T2, S_T2, S_HEAD))
    a("s_lshr_b32 s%d, s%d, 1" % (S_T1, S_WAVE))
    a("s_xor_b32 s%d, s%d, 1" % (S_T3, S_T1))
    a("s_lshl_b32 s%d, s%d, 1" % (S_T2, S_T2))
    a("s_add_u32 s%d, s%d, s%d" % (S_T2, S_T2, S_T3))
    a("s_lshl_b32 s%d, s%d, 1" % (S_T2, S_T2))
    a("s_and_b32 s%d, s%d, 1" % (S_T0, S_WAVE))
    a("s_add_u32 s%d, s%d, s%d" % (S_QROW, S_T2, S_T0))
    a("s_xor_b32 s%d, s%d, s%d" % (S_LO, S_T1, S_S))
    a("s_mul_i32 s%d, s%d, 18432" % (S_T0, S_QROW))
    a("s_add_u32 s%d, s%d, %d" % (S_T0, S_T0, WS_PART))
    a("s_add_u32 s%d, s%d, s%d" % (SRD_P, S_WS, S_T0))
    a("s_addc_u32 s%d, s%d, 0" % (SRD_P + 1, S_WS + 1))
    a("s_mov_b32 s%d, 18432" % (SRD_P + 2))
    a("s_mov_b32 s%d, 0x20000" % (SRD_P + 3))
    a("s_add_u32 s%d, s%d, %d" % (SRD_F, S_WS, WS_FLAG))
    a("s_addc_u32 s%d, s%d, 0" % (SRD_F + 1, S_WS + 1))
    a("s_mov_b32 s%d, 4096" % (SRD_F + 2))
    a("s_mov_b32 s%d, 0x20000" % (SRD_F + 3))
    g.zero_acc(a)
    a("s_barrier")
    prof(a, 6)
    g.main(a)
    prof(a, 1)
    T = V_T
    a("v_lshlrev_b32 v%d, 4, v%d" % (T, V_LANE))
    a("s_lshl_b32 s%d, s%d, 2" % (S_T0, S_QROW))
    a("v_mov_b32 v%d, s%d" % (T + 1, S_T0))
    a("s_cmp_eq_u32 s%d, 0" % S_LO)
    a("s_cbranch_scc1 L_k2_own")
    a("s_nop 7")
    tiles = [(nt, j) for j in range(9) for nt in range(2)]
    for k, (nt, j) in enumerate(tiles):
        a("s_mov_b32 s%d, %d" % (S_T1, k * 1024))
        a("buffer_store_dwordx4 %s, v%d, s[%d:%d], s%d offen%s" % (vr(g.acc(nt, j), 4), T, SRD_P, SRD_P + 3, S_T1, XSC))
    a("s_waitcnt vmcnt(0)")
    a("v_mov_b32 v%d, 1" % (T + 2))
    a("s_mov_b64 exec, 1")
    a("buffer_store_dword v%d, v%d, s[%d:%d], 0 offen%s" % (T + 2, T + 1, SRD_F, SRD_F + 3, XSC))
    a("s_mov_b64 exec, -1")
    a("s_endpgm")
    a.label("L_k2_own")
    a("v_lshrrev_b32 v%d, 4, v%d" % (T + 3, V_LANE))
    a("v_and_b32 v%d, 15, v%d" % (T + 4, V_LANE))
    a("v_lshlrev_b32 v%d, 3, v%d" % (T + 3, T + 3))
    a("v_lshl_add_u32 v%d, v%d, 12, v%d" % (T + 3, T + 4, T + 3))
    a("s_lshl_b32 s%d, s%d, 6" % (S_T0, S_WAVE))
    a("v_add_u32 v%d, s%d, v%d" % (T + 3, S_T0, T + 3))
    a("s_mov_b32 s%d, 0" % S_CNT)
    a.label("L_k2_poll")
    a("buffer_load_dword v%d, v%d, s[%d:%d], 0 offen%s" % (T + 2, T + 1, SRD_F, SRD_F + 3, XSC))
    a("s_waitcnt vmcnt(0)")
    a("v_readfirstlane_b32 s%d, v%d" % (S_T0, T + 2))
    a("s_add_u32 s%d, s%d, 1" % (S_CNT, S_CNT))
    a("s_cmp_eq_u32 s%d, 1" % S_T0)
    a("s_cbranch_scc1 L_k2_got")
    a("s_sleep 1")
    a("s_cmp_lt_u32 s%d, 4000000" % S_CNT)
    a("s_cbranch_scc1 L_k2_poll")
    a.label("L_k2_got")
    PB = 100
    for k in range(18):
        a("s_mov_b32 s%d, %d" % (S_T1, k * 1024))
        a("buffer_load_dwordx4 %s, v%d, s[%d:%d], s%d offen%s" % (vr(PB + k * 4, 4), T, SRD_P, SRD_P + 3, S_T1, XSC))
    for k, (nt, j) in enumerate(tiles):
        acc = g.acc(nt, j)
        a("s_waitcnt vmcnt(17)")
        for r in range(4):
            a("v_add_f32 v%d, v%d, v%d" % (acc + r, acc + r, PB + k * 4 + r))
        a("v_cvt_pk_bf16_f32 v%d, v%d, v%d" % (acc, acc, acc + 1))
        a("v_cvt_pk_bf16_f32 v%d, v%d, v%d" % (acc + 1, acc + 2, acc + 3))
        a("s_mov_b32 s%d, %d" % (S_T1, j * 16 * 4096))
        a("buffer_store_dwordx2 %s, v%d, s[%d:%d], s%d offen offset:%d" % (vr(acc, 2), T + 3, SRD_O, SRD_O + 3, S_T1, nt * 32))
    prof(a, 2)
    prof(a, 9, None, True)
    a("s_endpgm")
    a.label("L_k2_loader")
    if opts.get("lprio", "1") == "1": a("s_setprio 3")
    a("s_mul_i32 s%d, s%d, %d" % (S_T0, S_BLK, 1152 * 8192))
    a("s_mul_i32 s%d, s%d, %d" % (S_T1, S_B, 144 * 8192))
    a("s_add_u32 s%d, s%d, s%d" % (S_T0, S_T0, S_T1))
    a("s_lshl_b32 s%d, s%d, 12" % (S_T1, S_S))
    a("s_add_u32 s%d, s%d, s%d" % (S_T0, S_T0, S_T1))
    a("s_add_u32 s%d, s%d, s%d" % (SRD_X, S_WS, S_T0))
    a("s_addc_u32 s%d, s%d, 0" % (SRD_X + 1, S_WS + 1))
    a("s_mov_b32 s%d, %d" % (SRD_X + 2, 143 * 8192 + 4096))
    a("s_mov_b32 s%d, 0x20000" % (SRD_X + 3))
    a("s_lshl_b32 s%d, s%d, 8" % (S_T0, S_HEAD))
    a("s_lshl_b32 s%d, s%d, 22" % (S_T1, S_S))
    a("s_add_u32 s%d, s%d, s%d" % (S_T0, S_T0, S_T1))
    a("s_add_u32 s%d, s%d, s%d" % (SRD_W, S_PTR, S_T0))
    a("s_addc_u32 s%d, s%d, 0" % (SRD_W + 1, S_PTR + 1))
    a("s_mov_b32 s%d, %d" % (SRD_W + 2, 2047 * 2048 + 256))
    a("s_mov_b32 s%d, 0x20000" % (SRD_W + 3))
    a("s_mov_b32 s%d, s%d" % (S_KIDX, S_ROT))
    a("s_cmp_ge_u32 s%d, 6" % S_WAVE)
    a("s_cbranch_scc1 L_k2_lx")
    for which in ("W", "X"):
        if which == "W":
            ld = LoadW(32, 2048, ntx, 8, BUF1)
            a("s_sub_u32 s%d, s%d, 4" % (S_T2, S_WAVE))
        else:
            a.label("L_k2_lx")
            ld = LoadX(32, 8192, 9, ntx, BUF1)
            a("s_sub_u32 s%d, s%d, 6" % (S_T2, S_WAVE))
            a("s_mul_i32 s%d, s%d, 9" % (S_T2, S_T2))
        ld.setup(a, S_T2)
        loader_gemm_line(a, ld, 32, 4, VmTrack(), None)
        a("s_endpgm")
    a.label(done)
    a("s_endpgm")

def descriptor(name, vgpr, sgpr):
    return """.section .rodata,"a"
.p2align 6
.amdhsa_kernel %s
  .amdhsa_next_free_vgpr %d
  .amdhsa_next_free_sgpr %d
  .amdhsa_accum_offset %d
  .amdhsa_group_segment_fixed_size 0
  .amdhsa_kernarg_size 104
  .amdhsa_user_sgpr_count 2
  .amdhsa_user_sgpr_kernarg_segment_ptr 1
  .amdhsa_system_sgpr_workgroup_id_x 1
.end_amdhsa_kernel
""" % (name, vgpr, sgpr, vgpr)

def build():
    a = Asm()
    k1 = NAME + "_kernel"
    k2 = "oproj_kernel"
    hdr = []
    hdr.append("; @launch kernel=%s grid=(256,1,1) block=(512,1,1) lds=163840" % k1)
    hdr.append("; @launch kernel=%s grid=(256,1,1) block=(512,1,1) lds=%d" % (k2, 4 * STAGE1))
    hdr.append('.amdgcn_target "amdgcn-amd-amdhsa--gfx950"')
    hdr.append(".text")
    hdr.append(".globl %s" % k1)
    hdr.append(".globl %s" % k2)
    kernel_k1(a, k1)
    kernel_k2(a, k2)
    txt = "\n".join(hdr) + "\n" + "\n".join(a.lines) + "\n"
    txt += descriptor(k1, 244, 102)
    txt += descriptor(k2, 244, 96)
    return txt

if __name__ == "__main__":
    out = sys.argv[1] if len(sys.argv) > 1 else "cdna_kernels/%s.s" % NAME
    for o in sys.argv[2:]:
        k, v = o.split("=")
        OPTS[k] = v.replace("_", " ") if k.startswith(("nt_", "st_")) else v
    open(out, "w").write(build())
    print("wrote", out)
```
